```python
import torch

def _softmax(x, axis=-1):
    return torch.softmax(x, dim=axis)
def _gelu(x):
    return torch.nn.functional.gelu(x, approximate="tanh")
def _silu(x):
    return torch.nn.functional.silu(x)
def _sigmoid(x):
    return torch.sigmoid(x)
def _layernorm(x, axis=-1, eps=1e-5):
    m = x.mean(dim=axis, keepdim=True)
    v = x.var(dim=axis, keepdim=True, unbiased=False)
    return (x - m) / torch.sqrt(v + eps)
def _scatter_add(tgt, idx, src, axis=0):
    return tgt.clone().index_add_(axis, idx, src)
def _segment_sum(src, seg, n):
    out = torch.zeros((n,) + src.shape[1:], dtype=src.dtype)
    return out.index_add_(0, seg, src)
def _pad(x, pw):
    flat = tuple(v for pair in reversed(pw) for v in pair)
    return torch.nn.functional.pad(x, flat)

kernel_name = 'gather_scatter__molecular_angular_gemnet__graph'

def setup_inputs():

    _w = (lambda a: (lambda t: t.to(torch.bfloat16) if t.is_floating_point() else t)(torch.as_tensor(a)))
    N, deg, De, L = 10000, 32, 16, 3
    E = N * deg
    T = E * deg
    NR = 8
    dist = torch.rand(E).to(float)
    angle = (torch.rand(T) * torch.pi).to(float)
    centers = torch.linspace(0.0, 1.0, NR).to(float)
    ang_freq = torch.arange(1, L + 1).to(float)
    return {
        "m": _w((lambda *s: torch.randn(*s, dtype=torch.bfloat16) * 0.05)(E, De)),
        "idx_in": _w((lambda lo, hi, *s: torch.randint(lo, hi, s))(0, E, T).to(torch.int64)),
        "idx_out": _w((lambda lo, hi, *s: torch.randint(lo, hi, s))(0, E, T).to(torch.int64)),
        "dist": _w(dist),
        "angle": _w(angle),
        "centers": _w(centers),
        "ang_freq": _w(ang_freq),
        "w_rbf": _w((lambda *s: torch.randn(*s, dtype=torch.bfloat16) * 0.2)(NR, De)),
        "w_sbf": _w((lambda *s: torch.randn(*s, dtype=torch.bfloat16) * 0.2)(NR * L, De)),
        "w_down": _w((lambda *s: torch.randn(*s, dtype=torch.bfloat16) * 0.2)(De, De)),
        "w_up": _w((lambda *s: torch.randn(*s, dtype=torch.bfloat16) * 0.2)(De, De)),
    }

def reference(m, idx_in, idx_out, dist, angle, centers, ang_freq, w_rbf, w_sbf, w_down, w_up):
    E, De = m.shape[0], m.shape[1]
    NR = centers.shape[0]
    L = ang_freq.shape[0]
    rbf = torch.exp(-10.0 * (dist[:, None] - centers[None, :]) ** 2)
    cbf = torch.cos(ang_freq[None, :] * angle[:, None])
    rbf_t = rbf[idx_out]
    sbf = torch.reshape(rbf_t[:, :, None] * cbf[:, None, :], (-1, NR * L))
    x = (m[idx_in] @ w_down) * (sbf @ w_sbf)
    agg = _segment_sum(x, idx_out, E)
    return m + (agg @ w_up) * (rbf @ w_rbf)
```

```python
import re

class Asm:
    def __init__(self):
        self.lines = []
    def __call__(self, s):
        for l in s.strip('\n').split('\n'):
            l = l.strip()
            if l:
                self.lines.append(l)
    def label(self, n):
        self.lines.append(n + ':')
    def text(self):
        out = []
        for l in self.lines:
            if l.endswith(':') or l.startswith('.') or l.startswith(';'):
                out.append(l)
            else:
                out.append('    ' + l)
        return '\n'.join(out) + '\n'

def vr(base, n=1):
    if n == 1:
        return 'v%d' % base
    return 'v[%d:%d]' % (base, base + n - 1)

def sr(base, n=1):
    if n == 1:
        return 's%d' % base
    return 's[%d:%d]' % (base, base + n - 1)

TRANS = ('v_exp_f32','v_log_f32','v_rcp_f32','v_rsq_f32','v_sqrt_f32','v_sin_f32','v_cos_f32',
         'v_exp_f16','v_log_f16','v_rcp_f16','v_rsq_f16','v_sqrt_f16','v_sin_f16','v_cos_f16')

def regs_of(tok):
    tok = tok.strip()
    m = re.fullmatch(r'([vsa])(\d+)', tok)
    if m:
        return {(m.group(1), int(m.group(2)))}
    m = re.fullmatch(r'([vsa])\[(\d+):(\d+)\]', tok)
    if m:
        return {(m.group(1), i) for i in range(int(m.group(2)), int(m.group(3)) + 1)}
    if tok == 'vcc':
        return {('s', 'vcc')}
    if tok == 'exec':
        return {('s', 'exec')}
    return set()

def parse(line):
    line = line.split(';')[0].strip()
    if not line or line.endswith(':') or line.startswith('.'):
        return None
    parts = line.split(None, 1)
    op = parts[0]
    rest = parts[1] if len(parts) > 1 else ''
    rest2 = re.sub(r'\w+:\[[^\]]*\]', '', rest)
    ops = [o.strip() for o in rest2.split(',')]
    ops2 = []
    for o in ops:
        ops2.append(o.split()[0] if o.split() else '')
    return op, ops2, rest

def check_hazards(lines, verbose=True):
    hist = []
    probs = []
    insts = []
    for ln, l in enumerate(lines):
        p = parse(l)
        if p is None:
            continue
        insts.append((ln, l, p))
    seq = []
    for ln, l, (op, ops, rest) in insts:
        isvalu = op.startswith('v_') and not op.startswith('v_mfma')
        ismfma = op.startswith('v_mfma')
        isds = op.startswith('ds_')
        isvm = op.startswith('buffer_') or op.startswith('global_') or op.startswith('flat_')
        issalu = op.startswith('s_')
        writes = set(); reads = set()
        if isvalu or ismfma:
            if op.startswith('v_cmp'):
                writes = regs_of(ops[0]); reads = set().union(*[regs_of(o) for o in ops[1:]])
            elif op in ('v_readlane_b32', 'v_readfirstlane_b32'):
                writes = regs_of(ops[0]); reads = set().union(*[regs_of(o) for o in ops[1:]])
            else:
                writes = regs_of(ops[0]); reads = set().union(*[regs_of(o) for o in ops[1:]]) if len(ops) > 1 else set()
                if op.startswith('v_cndmask') and len(ops) == 3:
                    reads |= {('s', 'vcc')}
                if op.startswith('v_add_co') or op.startswith('v_sub_co'):
                    writes |= regs_of(ops[1])
                if op in ('v_permlane16_swap_b32', 'v_permlane32_swap_b32'):
                    writes |= regs_of(ops[1]); reads |= regs_of(ops[0])
                if op.startswith('v_pk_') or 'dpp' in rest or op.startswith('v_bfi') :
                    pass
                if 'd16' in op or op.startswith('v_fmac') or op.startswith('v_mac'):
                    reads |= regs_of(ops[0])
        elif isds:
            if 'read' in op or 'rtn' in op or 'bpermute' in op or 'swizzle' in op:
                writes = regs_of(ops[0]); reads = set().union(*[regs_of(o) for o in ops[1:]])
            else:
                reads = set().union(*[regs_of(o) for o in ops])
        elif isvm:
            if 'load' in op and 'lds' not in rest.split():
                writes = regs_of(ops[0]); reads = set().union(*[regs_of(o) for o in ops[1:]])
            else:
                reads = set().union(*[regs_of(o) for o in ops])
        elif issalu:
            if op in ('s_nop',):
                pass
            elif op.startswith('s_cmp') or op.startswith('s_cbranch') or op.startswith('s_branch') or op in ('s_waitcnt','s_barrier','s_endpgm','s_setprio'):
                reads = set().union(*[regs_of(o) for o in ops]) if ops else set()
            else:
                writes = regs_of(ops[0]); reads = set().union(*[regs_of(o) for o in ops[1:]]) if len(ops) > 1 else set()
        ws = 1
        if op == 's_nop':
            ws = int(ops[0], 0) + 1
        seq.append(dict(ln=ln, l=l, op=op, ops=ops, rest=rest, w=writes, r=reads, ws=ws,
                        valu=isvalu, mfma=ismfma, ds=isds, vm=isvm, salu=issalu))
    def dist(i, j):
        return sum(seq[k]['ws'] for k in range(i + 1, j))
    for j, b in enumerate(seq):
        for i in range(max(0, j - 24), j):
            a = seq[i]
            d = dist(i, j)
            need = 0; why = ''
            vw = {x for x in a['w'] if x[0] == 'v'}
            sw = {x for x in a['w'] if x[0] == 's'}
            if a['valu']:
                if b['mfma'] and (vw & b['r']):
                    need, why = 2, 'VALU->MFMA'
                if b['valu'] and 'dpp' in b['rest'] or (b['valu'] and ('quad_perm' in b['rest'] or 'row_' in b['rest'])):
                    src0 = regs_of(b['ops'][1]) if len(b['ops']) > 1 else set()
                    if vw & src0:
                        need, why = max(need, 2), 'VALU->DPP'
                if b['op'].startswith('v_permlane') and (vw & b['r']):
                    need, why = max(need, 2), 'VALU->permlane'
                if b['op'] in ('v_readlane_b32', 'v_readfirstlane_b32') and (vw & b['r']):
                    need, why = max(need, 1), 'VALU->readlane'
                if a['op'] in TRANS and b['valu'] and b['op'] not in TRANS and (vw & b['r']):
                    need, why = max(need, 1), 'trans->VALU'
                if a['op'] in TRANS and b['mfma'] and (vw & b['r']):
                    need, why = max(need, 2), 'trans->MFMA'
                if sw:
                    if b['vm'] and (sw & b['r']):
                        need, why = max(need, 5), 'VALU sgpr->VMEM'
                    if b['valu'] and (sw & b['r']):
                        if b['op'] in ('v_readlane_b32', 'v_writelane_b32'):
                            need, why = max(need, 4), 'VALU sgpr->lanesel'
                        else:
                            need, why = max(need, 2), 'VALU sgpr->VALU const'
                if ('op_sel' in a['rest'] and not a['op'].startswith('v_pk')) or 'sdwa' in a['op']:
                    if b['valu'] and (vw & b['r']):
                        need, why = max(need, 1), 'opsel/sdwa->VALU'
            if a['mfma']:
                passes = 8 if '32x32' in a['op'] else 4
                dv = {2: 5, 4: 8, 8: 12, 16: 20}[passes]
                if (b['valu'] or b['ds'] or b['vm']) and (vw & (b['r'] | b['w'])):
                    need, why = max(need, dv), 'MFMA D->use'
                if b['mfma'] and (vw & b['r']):
                    srcc = regs_of(b['ops'][3]) if len(b['ops']) > 3 else set()
                    if (vw & (b['r'] - srcc)):
                        need, why = max(need, dv), 'MFMA D->MFMA AB'
                    elif srcc == vw:
                        pass
                    else:
                        need, why = max(need, dv), 'MFMA D->MFMA C overlap'
                if b['mfma'] and (vw & b['w']) and not (vw & b['r']):
                    need, why = max(need, dv), 'MFMA WAW'
                srcc = regs_of(a['ops'][3]) if len(a['ops']) > 3 else set()
                if b['valu'] and (srcc & b['w']):
                    need, why = max(need, {2:1,4:3,8:7,16:15}[passes]), 'MFMA srcC WAR'
            if a['vm'] and 'store' in a['op'] and ('x3' in a['op'] or 'x4' in a['op']):
                data = regs_of(a['ops'][0])
                if (b['valu'] and (data & b['w'])):
                    need, why = max(need, 2), 'store x4 WAR'
                elif (data & b['w']):
                    need, why = max(need, 1), 'store x4 WAR'
            if d < need:
                probs.append('line %d: %s  <- line %d: %s : need %d have %d (%s)' % (b['ln'], b['l'], a['ln'], a['l'], need, d, why))
    return probs
```

```python
import sys, os
sys.path.insert(0, os.path.dirname(__file__))
from asmlib import Asm, vr, sr, check_hazards

NAME = 'gather_scatter__molecular_angular_gemnet__graph'
E = 320000
T = 10240000
NCH = 250
CH = 40960
NB = 250
BK = 1280
R = 5
XS_OFF = 0
YS_OFF = T * 4
TAB_OFF = T * 6
TAB_ROW = NB * 16

def srd(a, d, base_lo, base_hi, size):
    a(f'''
    s_mov_b32 s{d}, {base_lo}
    s_mov_b32 s{d+1}, {base_hi}
    s_mov_b32 s{d+2}, {size}
    s_mov_b32 s{d+3}, 0x00020000
    ''')

def srd_add(a, d, ptr, off_sreg, size):
    a(f'''
    s_add_u32 s{d}, s{ptr}, {off_sreg}
    s_addc_u32 s{d+1}, s{ptr+1}, 0
    s_mov_b32 s{d+2}, {size}
    s_mov_b32 s{d+3}, 0x00020000
    ''')

def wave_scan(a, v):
    for ctl in ['row_shr:1', 'row_shr:2', 'row_shr:4', 'row_shr:8']:
        a('s_nop 1')
        a(f'v_add_u32_dpp v{v}, v{v}, v{v} {ctl} row_mask:0xf bank_mask:0xf')
    a('s_nop 1')
    a(f'v_add_u32_dpp v{v}, v{v}, v{v} row_bcast:15 row_mask:0xa bank_mask:0xf')
    a('s_nop 1')
    a(f'v_add_u32_dpp v{v}, v{v}, v{v} row_bcast:31 row_mask:0xc bank_mask:0xf')

def gen_k1(a):
    VO = 8; VI = 48; VA = 88; TMP = 108
    a.label('k1_kernel')
    a(f'''
    s_cmp_ge_u32 s2, {NCH}
    s_cbranch_scc1 k1_end
    s_load_dwordx4 s[4:7], s[0:1], 8
    s_load_dwordx2 s[8:9], s[0:1], 32
    s_load_dwordx2 s[10:11], s[0:1], 104
    v_lshlrev_b32 v1, 3, v0
    v_mov_b32 v2, 0
    v_mov_b32 v3, 0
    ds_write_b64 v1, v[2:3]
    v_lshlrev_b32 v4, 4, v0
    v_mov_b32 v6, 1
    s_mul_i32 s36, s2, {CH*4}
    s_mul_i32 s37, s2, {CH*2}
    s_mul_i32 s38, s2, {TAB_ROW}
    s_waitcnt lgkmcnt(0)
    ''')
    srd_add(a, 12, 4, 's36', CH*4)
    srd_add(a, 16, 6, 's36', CH*4)
    srd_add(a, 20, 8, 's37', CH*2)
    srd_add(a, 24, 10, 's36', CH*4)
    a(f's_add_u32 s37, s37, {YS_OFF}')
    srd_add(a, 28, 10, 's37', CH*2)
    a(f's_add_u32 s38, s38, {TAB_OFF}')
    srd_add(a, 32, 10, 's38', TAB_ROW)
    for k in range(10):
        a(f's_mov_b32 s{40+k}, {k*16384}')
    for k in range(10):
        a(f'buffer_load_dwordx4 {vr(VO+4*k,4)}, v4, s[16:19], s{40+k} offen')
        a(f'buffer_load_dwordx4 {vr(VI+4*k,4)}, v4, s[12:15], s{40+k} offen')
    a('s_mov_b32 s39, 0xfffffb00')
    a('s_barrier')
    for k in range(10):
        a(f's_waitcnt vmcnt({18-2*k})')
        for i in range(4):
            e = 4*k+i
            t0 = TMP + 2*i; t1 = t0+1
            a(f'v_lshrrev_b32 v{t0}, 8, v{VO+e}')
            a(f'v_lshrrev_b32 v{t1}, 16, v{VI+e}')
            a(f'v_mul_u32_u24 v{t0}, 52429, v{t0}')
            a(f'v_lshrrev_b32 v{t0}, 18, v{t0}')
            a(f'v_mad_u32_u24 v{t1}, v{t0}, 5, v{t1}')
            a(f'v_mad_i32_i24 v{t0}, v{t0}, s39, v{VO+e}')
            a(f'v_lshlrev_b32 v{VO+e}, 2, v{t1}')
            a(f'v_lshl_add_u32 v{VI+e}, v{t0}, 19, v{VI+e}')
            a(f'ds_add_u32 v{VO+e}, v6')
            a(f'v_add_u32 v{VI+e}, 0x80000, v{VI+e}')
    for k in range(10):
        a(f's_mov_b32 s{50+k}, {k*8192}')
    for k in range(10):
        a(f'buffer_load_dwordx2 {vr(VA+2*k,2)}, v1, s[20:23], s{50+k} offen')
    a('''
    s_waitcnt lgkmcnt(0)
    s_barrier
    ''')
    C0 = TMP; C1 = TMP+1; S = TMP+2; INC = TMP+3; W = TMP+4; U = TMP+5; U2 = TMP+6
    a(f'''
    ds_read_b64 v[{C0}:{C1}], v1
    v_lshrrev_b32 v{W}, 6, v0
    v_lshlrev_b32 v{U}, 2, v{W}
    v_add_u32 v{U}, 16384, v{U}
    s_waitcnt lgkmcnt(0)
    v_add_u32 v{S}, v{C0}, v{C1}
    v_mov_b32 v{INC}, v{S}
    ''')
    wave_scan(a, INC)
    a(f'''
    s_mov_b32 exec_lo, 0
    s_mov_b32 exec_hi, 0x80000000
    ds_write_b32 v{U}, v{INC}
    s_mov_b64 exec, -1
    s_waitcnt lgkmcnt(0)
    s_barrier
    v_and_b32 v{U}, 15, v0
    v_lshlrev_b32 v{U2}, 2, v{U}
    ds_read_b32 v{U2}, v{U2} offset:16384
    v_cmp_lt_u32 vcc, v{U}, v{W}
    s_waitcnt lgkmcnt(0)
    s_nop 0
    v_cndmask_b32 v{U2}, 0, v{U2}, vcc
    ''')
    for ctl in ['row_shr:1', 'row_shr:2', 'row_shr:4', 'row_shr:8']:
        a('s_nop 1')
        a(f'v_add_u32_dpp v{U2}, v{U2}, v{U2} {ctl} row_mask:0xf bank_mask:0xf')
    a(f'''
    s_nop 1
    v_readlane_b32 s3, v{U2}, 15
    v_sub_u32 v{INC}, v{INC}, v{S}
    s_nop 0
    v_add_u32 v{INC}, s3, v{INC}
    v_add_u32 v{INC+1}, v{INC}, v{C0}
    ''')
    assert INC % 2 == 1 or True
    a(f'''
    v_mov_b32 v{TMP+8}, v{INC}
    v_mov_b32 v{TMP+9}, v{INC+1}
    ds_write_b64 v1, v[{TMP+8}:{TMP+9}]
    ds_write_b64 v1, v[{TMP+8}:{TMP+9}] offset:8192
    s_waitcnt lgkmcnt(0)
    s_barrier
    ''')
    P = TMP + 2
    a(f'''
    v_mul_u32_u24 v5, 20, v0
    ds_read2_b32 v[{P}:{P+1}], v5 offset0:0 offset1:1
    ''')
    a.lines.pop()
    a(f'''
    v_add_u32 v5, 8192, v5
    ds_read2_b32 v[{P}:{P+1}], v5 offset0:0 offset1:1
    ds_read2_b32 v[{P+2}:{P+3}], v5 offset0:2 offset1:3
    ds_read2_b32 v[{P+4}:{P+5}], v5 offset0:4 offset1:5
    ''')
    for e in range(40):
        a(f'ds_add_rtn_u32 v{VO+e}, v{VO+e}, v6')
    a(f'''
    s_waitcnt lgkmcnt(0)
    v_lshl_or_b32 v{P+6}, v{P+1}, 16, v{P}
    v_lshl_or_b32 v{P+7}, v{P+3}, 16, v{P+2}
    v_lshl_or_b32 v{P+8}, v{P+5}, 16, v{P+4}
    v_mov_b32 v{P+9}, 0
    ''')
    assert (P+6) % 2 == 0
    a(f'''
    buffer_store_dwordx4 {vr(P+6,4)}, v4, s[32:35], 0 offen
    s_barrier
    ''')
    for e in range(40):
        t = TMP + (e % 2)
        a(f'v_lshlrev_b32 v{t}, 2, v{VO+e}')
        a(f'ds_write_b32 v{t}, v{VI+e}')
    a(f'''
    s_waitcnt lgkmcnt(0)
    s_barrier
    v_add_u32 v5, 0x10000, v4
    v_add_u32 v7, 0x20000, v4
    ''')
    for k in range(10):
        base = ['v4', 'v5', 'v7'][k // 4]
        a(f'ds_read_b128 {vr(VI+4*k,4)}, {base} offset:{(k%4)*16384}')
    a('s_waitcnt vmcnt(0)')
    for k in range(10):
        a(f's_waitcnt lgkmcnt({min(9-k, 15)})')
        a(f'buffer_store_dwordx4 {vr(VI+4*k,4)}, v4, s[24:27], s{40+k} offen')
    a('s_barrier')
    for e in range(40):
        t = TMP + (e % 2)
        a(f'v_lshlrev_b32 v{t}, 1, v{VO+e}')
        if e % 2 == 0:
            a(f'ds_write_b16 v{t}, v{VA+e//2}')
        else:
            a(f'ds_write_b16_d16_hi v{t}, v{VA+e//2}')
    a(f'''
    s_waitcnt lgkmcnt(0)
    s_barrier
    ''')
    for k in range(5):
        base = ['v4', 'v5'][k // 4]
        a(f'ds_read_b128 {vr(VO+4*k,4)}, {base} offset:{(k%4)*16384}')
    for k in range(5):
        a(f's_waitcnt lgkmcnt({4-k})')
        a(f'buffer_store_dwordx4 {vr(VO+4*k,4)}, v4, s[28:31], s{40+k} offen')
    a.label('k1_end')
    a('s_endpgm')

RING = 0
RBF = 32768
ACC = 53504
K2_LDS = ACC + (BK+1)*64
G = 3

vP1, vP2, vW, vL4, vL2, vH16, v4j, vFq, vSt0, vLn0, vSt1, vLn1 = range(1, 13)
vB1 = 14; vB2 = 18; vBs = 22
def LAND(i): return 26 + 2*(i % 4)
def SL(i): return 34 + 10*(i % 4)
RA = 74; RB = 78; DmA = 82; DmB = 86; DgA = 90; DgB = 94
cA = 98; cB = 99; vG = 100; vT = 101
SM = 4; SX = 8; SY = 12
def sMask(i): return 16 + 2*(i % 4)
def sN(i): return 24 + (i % 4)
sL, sRd, sWp, sRem, sStart, sSeg, sCnt, sT0, sT1, sT2, s7ff, sWave = range(28, 40)
sQ = 40
sUn = 42
sBk = 43

class K2:
    def __init__(self, a):
        self.a = a
        self.ool = []
        self.uid = 0

    def gen_piece(self, px, smask, sn, capconst):
        a = self.a
        u = self.uid; self.uid += 1
        a(f'''
        s_cmp_eq_u32 s{sRem}, 0
        s_cbranch_scc1 k2_adv{u}
        ''')
        a.label(f'k2_have{u}')
        a(f'''
        s_min_u32 s{sn}, s{sRem}, 63
        s_add_u32 s{sT0}, s{sRd}, {capconst}
        s_sub_u32 s{sT0}, s{sT0}, s{sWp}
        s_min_u32 s{sn}, s{sn}, s{sT0}
        s_add_u32 s{sWp}, s{sWp}, s{sn}
        s_sub_u32 s{sRem}, s{sRem}, s{sn}
        s_max_u32 s{sT0}, s{sn}, 1
        s_bfm_b64 s[{smask}:{smask+1}], s{sT0}, 0
        s_lshl_b32 s{sT1}, s{sStart}, 2
        s_lshl_b32 s{sT2}, s{sStart}, 1
        s_add_u32 s{sStart}, s{sStart}, s{sn}
        s_mov_b64 exec, s[{smask}:{smask+1}]
        buffer_load_dword v{px}, v{vL4}, s[{SX}:{SX+3}], s{sT1} offen
        buffer_load_short_d16_hi v{px+1}, v{vL2}, s[{SY}:{SY+3}], s{sT2} offen
        s_mov_b64 exec, -1
        ''')
        o = Asm()
        o.label(f'k2_adv{u}')
        o(f'''
        s_add_u32 s{sSeg}, s{sSeg}, 1
        s_cmp_ge_u32 s{sSeg}, {16*R}
        s_cbranch_scc1 k2_exh{u}
        s_cmp_lt_u32 s{sSeg}, 64
        s_cbranch_scc0 k2_hi{u}
        v_readlane_b32 s{sStart}, v{vSt0}, s{sSeg}
        v_readlane_b32 s{sRem}, v{vLn0}, s{sSeg}
        s_branch k2_chk{u}
        ''')
        o.label(f'k2_hi{u}')
        o(f'''
        s_and_b32 s{sT0}, s{sSeg}, 63
        v_readlane_b32 s{sStart}, v{vSt1}, s{sT0}
        v_readlane_b32 s{sRem}, v{vLn1}, s{sT0}
        ''')
        o.label(f'k2_chk{u}')
        o(f'''
        s_cmp_eq_u32 s{sRem}, 0
        s_cbranch_scc1 k2_adv{u}
        s_branch k2_have{u}
        ''')
        o.label(f'k2_exh{u}')
        o(f'''
        v_mov_b32 v{vL4}, 0x80000000
        v_mov_b32 v{vL2}, 0x80000000
        s_mov_b32 s{sRem}, 0x7fffffff
        s_mov_b32 s{sStart}, 0
        s_mov_b32 s{sSeg}, {16*R}
        s_branch k2_have{u}
        ''')
        self.ool.append(o)

    def land(self, px, smask, sn, a=None):
        a = a or self.a
        a(f'''
        s_mov_b64 exec, s[{smask}:{smask+1}]
        ds_write_b64 v{vW}, v[{px}:{px+1}]
        s_mov_b64 exec, -1
        s_lshl_b32 s{sT0}, s{sn}, 3
        v_add_u32 v{vT}, s{sT0}, v{vW}
        s_add_u32 s{sL}, s{sL}, s{sn}
        v_bfi_b32 v{vW}, s{s7ff}, v{vT}, v{vW}
        ''')

    def compute_pre(self, c):
        a = self.a
        b = SL(c)
        XA, AA, XB, AB, OA, OB = b, b+1, b+2, b+3, b+4, b+5
        a(f'''
        v_lshrrev_b32 v{XA}, 15, v{XA}
        v_lshrrev_b32 v{XB}, 15, v{XB}
        v_and_b32 v{XA}, 0x7ff0, v{XA}
        v_and_b32 v{XB}, 0x7ff0, v{XB}
        ds_read_b128 {vr(RA,4)}, v{XA} offset:{RBF}
        ds_read_b128 {vr(RB,4)}, v{XB} offset:{RBF}
        v_mul_f32 v{cA}, v{vFq}, v{AA}
        v_mul_f32 v{cB}, v{vFq}, v{AB}
        v_cvt_pk_bf16_f32 v{cA}, 0, v{cA}
        v_cvt_pk_bf16_f32 v{cB}, 0, v{cB}
        v_mul_f32 v{cA}, 0.15915494, v{cA}
        v_mul_f32 v{cB}, 0.15915494, v{cB}
        v_fract_f32 v{cA}, v{cA}
        v_fract_f32 v{cB}, v{cB}
        v_cos_f32 v{cA}, v{cA}
        v_cos_f32 v{cB}, v{cB}
        v_lshrrev_b32 v{OA}, 13, v{OA}
        v_lshrrev_b32 v{OB}, 13, v{OB}
        v_cvt_f16_f32 v{cA}, v{cA}
        v_cvt_f16_f32 v{cB}, v{cB}
        v_and_b32 v{OA}, 0x1ffc0, v{OA}
        v_and_b32 v{OB}, 0x1ffc0, v{OB}
        ''')

    def compute_md(self, c):
        a = self.a
        M = SL(c) + 6
        a(f'''
        v_mfma_f32_16x16x32_bf16 {vr(DmA,4)}, {vr(M,4)}, {vr(vB1,4)}, 0
        v_mfma_f32_16x16x32_bf16 {vr(DmB,4)}, {vr(M,4)}, {vr(vB2,4)}, 0
        ''')

    def compute_g(self, c, lgk):
        a = self.a
        a(f's_waitcnt lgkmcnt({lgk})')
        for i in range(4):
            a(f'v_pk_mul_f16 v{RA+i}, v{RA+i}, v{cA} op_sel_hi:[1,0]')
        for i in range(4):
            a(f'v_pk_mul_f16 v{RB+i}, v{RB+i}, v{cB} op_sel_hi:[1,0]')
        a(f'''
        v_mfma_f32_16x16x32_f16 {vr(DgA,4)}, {vr(RA,4)}, {vr(vBs,4)}, 0
        s_nop 0
        v_mfma_f32_16x16x32_f16 {vr(DgB,4)}, {vr(RB,4)}, {vr(vBs,4)}, 0
        ''')

    def compute_post(self, c, pad):
        a = self.a
        b = SL(c)
        OA, OB = b+4, b+5
        for r in range(4):
            a(f'v_add_u32_dpp v{RA+r}, v{OA}, v{v4j} quad_perm:[{r},{r},{r},{r}] row_mask:0xf bank_mask:0xf')
        for r in range(4):
            a(f'v_add_u32_dpp v{RB+r}, v{OB}, v{v4j} quad_perm:[{r},{r},{r},{r}] row_mask:0xf bank_mask:0xf')
        if pad:
            a(f's_nop {pad-1}')
        a(f'''
        v_pk_mul_f32 v[{DgA}:{DgA+1}], v[{DgA}:{DgA+1}], v[{DmA}:{DmA+1}]
        v_pk_mul_f32 v[{DgA+2}:{DgA+3}], v[{DgA+2}:{DgA+3}], v[{DmA+2}:{DmA+3}]
        ''')
        for r in range(4):
            a(f'ds_add_f32 v{RA+r}, v{DgA+r} offset:{ACC}')
        a(f'''
        v_pk_mul_f32 v[{DgB}:{DgB+1}], v[{DgB}:{DgB+1}], v[{DmB}:{DmB+1}]
        v_pk_mul_f32 v[{DgB+2}:{DgB+3}], v[{DgB+2}:{DgB+3}], v[{DmB+2}:{DmB+3}]
        ''')
        for r in range(4):
            a(f'ds_add_f32 v{RB+r}, v{DgB+r} offset:{ACC}')

    def step(self, k, compute, vmwait):
        a = self.a
        s = k % 4; c = (k+1) % 4
        b = SL(s)
        XA, AA, XB, AB, OA, OB, M = b, b+1, b+2, b+3, b+4, b+5, b+6
        if compute:
            self.compute_pre(c)
        a(f's_waitcnt vmcnt({vmwait})')
        self.land(LAND(c), sMask(c), sN(c))
        if compute:
            self.compute_md(c)
        u = self.uid; self.uid += 1
        a(f'''
        s_sub_u32 s{sT0}, s{sL}, s{sRd}
        s_cmp_lt_u32 s{sT0}, 32
        s_cbranch_scc1 k2_slow{u}
        ''')
        a.label(f'k2_back{u}')
        a(f'''
        ds_read_b64 v[{XA}:{AA}], v{vP1} offset:{k*256}
        ds_read_b64 v[{XB}:{AB}], v{vP1} offset:{k*256+128}
        ds_read_b32 v{OA}, v{vP2} offset:{k*256}
        ds_read_b32 v{OB}, v{vP2} offset:{k*256+128}
        s_add_u32 s{sRd}, s{sRd}, 32
        ''')
        o = Asm()
        o.label(f'k2_slow{u}')
        o('s_waitcnt vmcnt(0)')
        for j in (k+2, k+3):
            self.land(LAND(j), sMask(j), sN(j), o)
            o(f'''
            s_mov_b32 s{sN(j)}, 0
            s_mov_b64 s[{sMask(j)}:{sMask(j)+1}], 1
            ''')
        o.label(f'k2_slowl{u}')
        o(f'''
        s_sub_u32 s{sT0}, s{sL}, s{sRd}
        s_cmp_ge_u32 s{sT0}, 32
        s_cbranch_scc1 k2_back{u}
        ''')
        sv = self.a; self.a = o
        self.gen_piece(LAND(s), sMask(s), sN(s), 255)
        self.a = sv
        o('s_waitcnt vmcnt(0)')
        self.land(LAND(s), sMask(s), sN(s), o)
        o(f's_branch k2_slowl{u}')
        self.ool.append(o)
        self.gen_piece(LAND(s), sMask(s), sN(s), 319)
        if compute:
            self.compute_g(c, 5)
            a('s_waitcnt lgkmcnt(0)')
        else:
            a('s_waitcnt lgkmcnt(0)')
        a(f'''
        v_cndmask_b32 v{vG}, v{XB}, v{XA}, s[{sQ}:{sQ+1}]
        v_and_b32 v{vG}, 0x7ffff, v{vG}
        v_lshl_add_u32 v{vG}, v{vG}, 5, v{vH16}
        buffer_load_dwordx4 {vr(M,4)}, v{vG}, s[{SM}:{SM+3}], 0 offen
        ''')
        if compute:
            self.compute_post(c, 0)

    def drain_compute(self, c, vmwait):
        a = self.a
        self.compute_pre(c)
        a(f's_waitcnt vmcnt({vmwait})')
        self.compute_md(c)
        self.compute_g(c, 0)
        self.compute_post(c, 1)

def rnd(a, v, src=None):
    a(f'v_cvt_pk_bf16_f32 v{v}, 0, v{src if src is not None else v}')

def gen_k2(a):
    k = K2(a)
    a.label('k2_kernel')
    a(f'''
    s_cmp_ge_u32 s2, {NB}
    s_cbranch_scc1 k2_end
    s_mov_b32 s{sBk}, s2
    s_load_dwordx2 s[44:45], s[0:1], 0
    s_load_dwordx2 s[46:47], s[0:1], 104
    s_load_dwordx2 s[48:49], s[0:1], 24
    s_load_dwordx2 s[50:51], s[0:1], 40
    s_load_dwordx2 s[52:53], s[0:1], 48
    s_load_dwordx2 s[54:55], s[0:1], 64
    s_load_dwordx2 s[56:57], s[0:1], 72
    v_lshrrev_b32 v13, 6, v0
    v_and_b32 v74, 63, v0            ; lane
    v_readfirstlane_b32 s{sWave}, v13
    v_and_b32 v75, 15, v74           ; t / j / i
    v_lshrrev_b32 v76, 4, v74        ; q
    s_waitcnt lgkmcnt(0)
    ''')
    LANE, TT, QQ = 74, 75, 76
    srd(a, SM, 's44', 's45', E*32)
    a(f's_add_u32 s58, s46, {XS_OFF}\ns_addc_u32 s59, s47, 0')
    srd(a, SX, 's58', 's59', T*4)
    a(f's_add_u32 s58, s46, {YS_OFF}\ns_addc_u32 s59, s47, 0')
    srd(a, SY, 's58', 's59', T*2)
    a(f's_add_u32 s58, s46, {TAB_OFF}\ns_addc_u32 s59, s47, 0')
    srd(a, 60, 's58', 's59', NCH*TAB_ROW)
    a(f'''
    s_load_dwordx4 s[64:67], s[50:51], 0
    ''')
    a(f'''
    v_lshlrev_b32 v77, 4, v{TT}
    v_add_u32 v77, s{sWave}, v77          ; c
    v_mul_u32_u24 v78, {TAB_ROW}, v77
    s_lshl_b32 s{sT0}, s{sBk}, 4
    v_add_u32 v78, s{sT0}, v78            ; c*4000 + b*16
    v_lshl_add_u32 v79, v{QQ}, 1, v78     ; + 2*rr
    buffer_load_ushort v80, v79, s[60:63], 0 offen
    buffer_load_ushort v81, v79, s[60:63], 0 offen offset:2
    buffer_load_ushort v82, v78, s[60:63], 0 offen offset:8
    buffer_load_ushort v83, v78, s[60:63], 0 offen offset:10
    v_mul_u32_u24 v77, {CH}, v77          ; c*40960
    ''')
    a(f'''
    s_mov_b32 s{s7ff}, 0x7ff
    s_mov_b32 s{sQ}, -1
    s_mov_b32 s{sQ+1}, 0
    s_lshl_b32 s{sT0}, s{sWave}, 11
    v_lshlrev_b32 v{vP1}, 3, v{TT}
    v_add_u32 v{vP1}, s{sT0}, v{vP1}
    v_and_b32 v84, 3, v{TT}
    v_lshl_add_u32 v84, v{QQ}, 2, v84     ; 4q + (i&3)
    v_lshlrev_b32 v{vP2}, 3, v84
    v_add_u32 v{vP2}, s{sT0}, v{vP2}
    v_lshlrev_b32 v{vW}, 3, v{LANE}
    v_add_u32 v{vW}, s{sT0}, v{vW}
    v_lshlrev_b32 v{vL4}, 2, v{LANE}
    v_lshlrev_b32 v{vL2}, 1, v{LANE}
    v_and_b32 v{vH16}, 1, v{QQ}
    v_lshlrev_b32 v{vH16}, 4, v{vH16}
    v_lshlrev_b32 v{v4j}, 2, v{TT}
    ''')
    for i in range(4):
        a(f'v_mov_b32 v{LAND(i)+1}, 0')
    for i in range(4):
        a(f'v_mov_b32 v{SL(i)+1}, 0')
        a(f'v_mov_b32 v{SL(i)+3}, 0')
    a(f'''
    s_waitcnt vmcnt(0)
    v_add_u32 v{vSt0}, v77, v80
    v_sub_u32 v{vLn0}, v81, v80
    v_add_u32 v{vSt1}, v77, v82
    v_sub_u32 v{vLn1}, v83, v82
    v_cmp_gt_u32 vcc, 16, v{LANE}
    s_nop 1
    v_cndmask_b32 v{vLn1}, 0, v{vLn1}, vcc
    v_add_u32 v85, v{vLn0}, v{vLn1}
    ''')
    wave_scan(a, 85)
    a(f'''
    s_nop 1
    v_readlane_b32 s{sCnt}, v85, 63
    s_mov_b32 s{sL}, 0
    s_mov_b32 s{sRd}, 0
    s_mov_b32 s{sWp}, 0
    s_mov_b32 s{sRem}, 0
    s_mov_b32 s{sStart}, 0
    s_mov_b32 s{sSeg}, -1
    s_add_u32 s{sCnt}, s{sCnt}, 31
    s_lshr_b32 s{sCnt}, s{sCnt}, 5
    s_max_u32 s{sCnt}, s{sCnt}, 3
    s_sub_u32 s{sCnt}, s{sCnt}, 3
    ''')
    tmp_pairs = [SL(0), SL(0)+2, SL(1), SL(1)+2, SL(2), SL(2)+2, SL(3)]
    for i, p in enumerate(tmp_pairs):
        k.gen_piece(p, 70+2*i, 84+i, 255)
    k.gen_piece(LAND(1), sMask(1), sN(1), 255)
    k.gen_piece(LAND(2), sMask(2), sN(2), 287)
    k.gen_piece(LAND(3), sMask(3), sN(3), 319)
    a(f'''
    v_mov_b32 v86, 0
    v_mov_b32 v87, 0
    v_mov_b32 v88, 0
    v_mov_b32 v89, 0
    v_lshlrev_b32 v90, 4, v0
    v_add_u32 v90, {ACC}, v90
    ds_write_b128 v90, v[86:89]
    ds_write_b128 v90, v[86:89] offset:16384
    ds_write_b128 v90, v[86:89] offset:32768
    ds_write_b128 v90, v[86:89] offset:49152
    v_add_u32 v90, 0x10000, v90
    ds_write_b128 v90, v[86:89]
    v_cmp_gt_u32 vcc, 4, v0
    s_and_saveexec_b64 s[58:59], vcc
    ds_write_b128 v90, v[86:89] offset:16384
    s_mov_b64 exec, s[58:59]
    ''')
    a(f'''
    v_cmp_eq_u32 vcc, 0, v0
    s_and_saveexec_b64 s[58:59], vcc
    v_mov_b32 v90, {RBF}
    ds_write_b128 v90, v[86:89]
    s_mov_b64 exec, s[58:59]
    ''')
    srd(a, 60, 's48', 's49', E*2)
    a('s_waitcnt lgkmcnt(0)')
    for i in range(4):
        a(f's_lshl_b32 s{92+2*i}, s{64+i}, 16')
        a(f's_and_b32 s{93+2*i}, s{64+i}, 0xffff0000')
    a(f'''
    s_mul_i32 s{sT0}, s{sBk}, {BK*2}
    v_lshlrev_b32 v90, 1, v0
    v_add_u32 v90, s{sT0}, v90
    buffer_load_ushort v91, v90, s[60:63], 0 offen
    buffer_load_ushort v92, v90, s[60:63], 0 offen offset:2048
    s_mov_b32 s{sT1}, 0xc1200000         ; -10.0
    s_mov_b32 s{sT2}, 0x3fb8aa3b         ; log2(e)
    s_mov_b32 s58, 0x47000000            ; 2^15
    ''')
    def rbf_rows(dv, addr_expr_pass):
        a(f'v_lshlrev_b32 v{dv}, 16, v{dv}')
        for r in range(8):
            a(f'v_subrev_f32 v{98+r}, s{92+r}, v{dv}')
        for r in range(8):
            rnd(a, 98+r)
        for r in range(8):
            a(f'v_mul_f32 v{98+r}, v{98+r}, v{98+r}')
        for r in range(8):
            rnd(a, 98+r)
        for r in range(8):
            a(f'v_mul_f32 v{98+r}, s{sT1}, v{98+r}')
        for r in range(8):
            rnd(a, 98+r)
        for r in range(8):
            a(f'v_mul_f32 v{98+r}, s{sT2}, v{98+r}')
        for r in range(8):
            a(f'v_exp_f32 v{98+r}, v{98+r}')
        a('s_nop 0')
        for r in range(8):
            rnd(a, 98+r)
        for r in range(8):
            a(f'v_mul_f32 v{98+r}, s58, v{98+r}')
        for r in range(4):
            a(f'v_cvt_pkrtz_f16_f32 v{94+r}, v{98+2*r}, v{99+2*r}')
    a('s_waitcnt vmcnt(0)')
    rbf_rows(91, 0)
    a(f'''
    v_lshlrev_b32 v93, 4, v0
    ds_write_b128 v93, v[94:97] offset:{RBF+16}
    ''')
    rbf_rows(92, 1)
    a(f'''
    v_cmp_gt_u32 vcc, {BK-1024}, v0
    s_and_saveexec_b64 s[58:59], vcc
    ds_write_b128 v93, v[94:97] offset:{RBF+16+16384}
    s_mov_b64 exec, s[58:59]
    ''')
    for i, p in enumerate(tmp_pairs):
        k.land(p, 70+2*i, 84+i)
    srd(a, 60, 's56', 's57', 16*16*2)
    a(f'''
    v_and_b32 v90, 1, v{QQ}
    v_lshlrev_b32 v90, 8, v90             ; (q&1)*8 rows * 32 B
    v_lshl_add_u32 v90, v{TT}, 1, v90
    ''')
    for i in range(8):
        a(f'buffer_load_ushort v{98+i}, v90, s[60:63], 0 offen offset:{i*32}')
    srd(a, 64, 's54', 's55', 24*16*2)
    a(f'''
    v_lshlrev_b32 v91, 5, v{QQ}
    v_lshl_add_u32 v91, v{TT}, 1, v91     ; q*32 + j*2
    ''')
    for r in range(8):
        a(f'buffer_load_ushort v{106+r}, v91, s[64:67], 0 offen offset:{r*96}')
    srd(a, 68, 's52', 's53', 6)
    a(f'''
    v_lshlrev_b32 v92, 1, v{QQ}
    buffer_load_ushort v{vFq}, v92, s[68:71], 0 offen
    s_waitcnt vmcnt(0)
    v_lshlrev_b32 v{vFq}, 16, v{vFq}
    ''')
    for i in range(4):
        a(f'v_lshl_or_b32 v{98+2*i}, v{99+2*i}, 16, v{98+2*i}')
    for i in range(4):
        a(f'v_cndmask_b32 v{vB1+i}, 0, v{98+2*i}, s[{sQ}:{sQ+1}]')
        a(f'v_cndmask_b32 v{vB2+i}, v{98+2*i}, 0, s[{sQ}:{sQ+1}]')
    a(f'v_cmp_gt_u32 vcc, 3, v{QQ}')
    for r in range(8):
        a(f'v_lshlrev_b32 v{106+r}, 16, v{106+r}')
    for r in range(8):
        a(f'v_cndmask_b32 v{106+r}, 0, v{106+r}, vcc')
    a(f'v_and_b32 v90, 0x7fffffff, v106')
    for r in range(1, 8):
        a(f'v_and_b32 v91, 0x7fffffff, v{106+r}')
        a(f'v_max_u32 v90, v90, v91')
    for ctl in ['row_shr:1', 'row_shr:2', 'row_shr:4', 'row_shr:8']:
        a('s_nop 1')
        a(f'v_max_u32_dpp v90, v90, v90 {ctl} row_mask:0xf bank_mask:0xf')
    a('s_nop 1')
    a(f'v_max_u32_dpp v90, v90, v90 row_bcast:15 row_mask:0xa bank_mask:0xf')
    a('s_nop 1')
    a(f'v_max_u32_dpp v90, v90, v90 row_bcast:31 row_mask:0xc bank_mask:0xf')
    a(f'''
    s_nop 1
    v_readlane_b32 s{sT0}, v90, 63
    s_lshr_b32 s{sT0}, s{sT0}, 23         ; eb
    s_min_u32 s{sT0}, s{sT0}, 253
    s_lshl_b32 s{sUn}, s{sT0}, 23         ; 2^(eb-127)
    s_sub_u32 s{sT0}, 254, s{sT0}
    s_lshl_b32 s{sT0}, s{sT0}, 23         ; 2^(127-eb)
    ''')
    for r in range(8):
        a(f'v_mul_f32 v{106+r}, s{sT0}, v{106+r}')
    for i in range(4):
        a(f'v_cvt_f16_f32 v{106+2*i}, v{106+2*i}')
        a(f'v_cvt_f16_f32 v{107+2*i}, v{107+2*i}')
    for i in range(4):
        a(f'v_pack_b32_f16 v{vBs+i}, v{106+2*i}, v{107+2*i}')
    a('''
    s_waitcnt lgkmcnt(0)
    s_barrier
    ''')
    k.step(0, False, 4)
    k.step(1, False, 5)
    k.step(2, False, 6)
    a(f'''
    s_cmp_eq_u32 s{sCnt}, 0
    s_cbranch_scc1 k2_drain2
    ''')
    a.label('k2_loop')
    for kk in [3, 4, 5, 6, 7, 0, 1, 2]:
        k.step(kk, True, 6)
        a(f'''
        s_sub_u32 s{sCnt}, s{sCnt}, 1
        s_cmp_eq_u32 s{sCnt}, 0
        s_cbranch_scc1 k2_drain{kk % 4}
        ''')
    a('s_branch k2_loop')
    for j in range(4):
        a.label(f'k2_drain{j}')
        k.drain_compute((j + 2) % 4, 6)
        k.drain_compute((j + 3) % 4, 3)
        k.drain_compute(j, 0)
        a('s_branch k2_epi')
    for o in k.ool:
        a.lines.extend(o.lines)
    a.label('k2_epi')
    a(f'''
    s_waitcnt vmcnt(0) lgkmcnt(0)
    s_load_dwordx2 s[48:49], s[0:1], 56
    s_load_dwordx2 s[50:51], s[0:1], 80
    s_load_dwordx2 s[52:53], s[0:1], 88
    v_and_b32 v74, 63, v0
    v_and_b32 v75, 15, v74
    v_lshrrev_b32 v76, 4, v74
    s_waitcnt lgkmcnt(0)
    ''')
    srd(a, 60, 's48', 's49', 8*16*2)
    srd(a, 64, 's50', 's51', 16*16*2)
    srd(a, 68, 's52', 's53', E*32)
    a(f'''
    v_lshlrev_b32 v77, 7, v{QQ}
    v_lshl_add_u32 v77, v{TT}, 1, v77
    ''')
    for i in range(4):
        a(f'buffer_load_ushort v{80+i}, v77, s[64:67], 0 offen offset:{i*32}')
    for i in range(4):
        a(f'buffer_load_ushort v{84+i}, v77, s[60:63], 0 offen offset:{i*32}')
    a(f'''
    s_barrier
    s_waitcnt vmcnt(0)
    v_lshl_or_b32 v14, v81, 16, v80
    v_lshl_or_b32 v15, v83, 16, v82
    v_lshl_or_b32 v16, v85, 16, v84
    v_lshl_or_b32 v17, v87, 16, v86
    ''')
    a(f'''
    s_lshl_b32 s{sT0}, s{sWave}, 4
    v_add_u32 v78, s{sT0}, v{TT}                 ; e_local
    v_lshlrev_b32 v18, 6, v78
    v_lshl_add_u32 v18, v{QQ}, 4, v18
    v_and_b32 v79, 1, v{QQ}
    v_lshlrev_b32 v79, 3, v79
    v_lshl_add_u32 v19, v78, 4, v79
    s_mul_i32 s{sT1}, s{sBk}, {BK*32}
    v_lshlrev_b32 v20, 5, v78
    v_lshl_add_u32 v20, v{QQ}, 3, v20
    v_add_u32 v20, s{sT1}, v20
    s_mov_b32 s58, 0x38000000                    ; 2^-15
    ''')
    for t in range(5):
        b0 = 24 + 16*t
        a(f'ds_read_b128 {vr(b0,4)}, v18 offset:{ACC+64+t*256*64 if ACC+64+t*256*64 < 65536 else 0}' if False else '')
    for t in range(5):
        b0 = 24 + 16*t
        if t == 0:
            a(f'v_add_u32 v18, {ACC+64}, v18')
        else:
            a(f'v_add_u32 v18, 16384, v18')
        a(f'ds_read_b128 {vr(b0,4)}, v18')
        a(f'ds_read_b64 v[{b0+4}:{b0+5}], v19 offset:{RBF+16+t*4096}')
        a(f's_mov_b32 s{44+t}, {t*8192}')
        a(f'buffer_load_dwordx2 v[{b0+6}:{b0+7}], v20, s[{SM}:{SM+3}], s{44+t} offen')
    for t in range(5):
        b0 = 24 + 16*t
        a(f's_waitcnt lgkmcnt({2*(4-t)})')
        for i in range(4):
            a(f'v_mul_f32 v{b0+i}, s58, v{b0+i}')
        for i in range(4):
            a(f'v_mul_f32 v{b0+i}, s{sUn}, v{b0+i}')
        a(f'v_cvt_pk_bf16_f32 v{b0}, v{b0}, v{b0+1}')
        a(f'v_cvt_pk_bf16_f32 v{b0+1}, v{b0+2}, v{b0+3}')
        a(f'''
        v_cvt_f32_f16 v{b0+8}, v{b0+4}
        v_lshrrev_b32 v{b0+4}, 16, v{b0+4}
        v_cvt_f32_f16 v{b0+10}, v{b0+5}
        v_lshrrev_b32 v{b0+5}, 16, v{b0+5}
        v_cvt_f32_f16 v{b0+9}, v{b0+4}
        v_cvt_f32_f16 v{b0+11}, v{b0+5}
        ''')
        for i in range(4):
            a(f'v_mul_f32 v{b0+8+i}, s58, v{b0+8+i}')
        a(f'v_cvt_pk_bf16_f32 v{b0+2}, v{b0+8}, v{b0+9}')
        a(f'v_cvt_pk_bf16_f32 v{b0+3}, v{b0+10}, v{b0+11}')
        a(f'''
        s_nop 1
        v_mfma_f32_16x16x16_bf16 {vr(b0+8,4)}, v[14:15], v[{b0}:{b0+1}], 0
        v_mfma_f32_16x16x16_bf16 {vr(b0+12,4)}, v[16:17], v[{b0+2}:{b0+3}], 0
        ''')
    for t in range(5):
        b0 = 24 + 16*t
        if t == 0:
            a('s_nop 7')
        for i in range(8):
            rnd(a, b0+8+i)
        for i in range(4):
            a(f'v_mul_f32 v{b0+8+i}, v{b0+8+i}, v{b0+12+i}')
        for i in range(4):
            rnd(a, b0+8+i)
        a(f's_waitcnt vmcnt({4-t + t})' if False else f's_waitcnt vmcnt({4-t+t})' if False else '')
        a(f's_waitcnt vmcnt({4})' if False else '')
    a('s_waitcnt vmcnt(0)')
    for t in range(5):
        b0 = 24 + 16*t
        a(f'''
        v_lshlrev_b32 v{b0+12}, 16, v{b0+6}
        v_and_b32 v{b0+13}, 0xffff0000, v{b0+6}
        v_lshlrev_b32 v{b0+14}, 16, v{b0+7}
        v_and_b32 v{b0+15}, 0xffff0000, v{b0+7}
        ''')
        for i in range(4):
            a(f'v_add_f32 v{b0+8+i}, v{b0+8+i}, v{b0+12+i}')
        a(f'v_cvt_pk_bf16_f32 v{b0}, v{b0+8}, v{b0+9}')
        a(f'v_cvt_pk_bf16_f32 v{b0+1}, v{b0+10}, v{b0+11}')
        a(f'buffer_store_dwordx2 v[{b0}:{b0+1}], v20, s[68:71], s{44+t} offen')
    a.label('k2_end')
    a('s_endpgm')

HEADER = f'''; Kernarg layout (112 bytes): m 0, idx_in 8, idx_out 16, dist 24, angle 32, centers 40, ang_freq 48,
; @launch kernel=k1_kernel grid=({NCH},1,1) block=(1024,1,1) lds=163840
; @launch kernel=k2_kernel grid=({NB},1,1) block=(1024,1,1) lds={K2_LDS}
.amdgcn_target "amdgcn-amd-amdhsa--gfx950"
.text
'''

def kd(name, vgpr, sgpr=102):
    acc = (vgpr + 3) // 4 * 4
    return f'''.amdhsa_kernel {name}
  .amdhsa_next_free_vgpr {vgpr}
  .amdhsa_next_free_sgpr {sgpr}
  .amdhsa_accum_offset {acc}
  .amdhsa_group_segment_fixed_size 0
  .amdhsa_kernarg_size 112
  .amdhsa_user_sgpr_count 2
  .amdhsa_user_sgpr_kernarg_segment_ptr 1
  .amdhsa_system_sgpr_workgroup_id_x 1
.end_amdhsa_kernel
'''

def main():
    a1 = Asm(); gen_k1(a1)
    a2 = Asm(); gen_k2(a2)
    for nm, a in (('k1', a1), ('k2', a2)):
        pr = check_hazards(a.lines)
        for p in pr:
            print('HAZARD', nm, p)
    txt = HEADER
    for nm, a in (('k1_kernel', a1), ('k2_kernel', a2)):
        txt += f'.globl {nm}\n.p2align 8\n.type {nm},@function\n' + a.text()
    txt += '.section .rodata,"a"\n.p2align 6\n'
    txt += kd('k1_kernel', 124) + '.p2align 6\n' + kd('k2_kernel', 120)
    out = sys.argv[1] if len(sys.argv) > 1 else f'cdna_kernels/{NAME}.s'
    open(out, 'w').write(txt)
    print('wrote', out, len(txt), 'bytes')

main()
```

```python
import sys, os
OPT = set(os.environ.get('OPT','').split(','))
sys.path.insert(0, os.path.dirname(__file__))
from asmlib import Asm, vr, sr, check_hazards

NAME = 'gather_scatter__molecular_angular_gemnet__graph'
E = 320000
T = 10240000
NCH = 250
CH = 40960
NB = 250
BK = 1280
R = 5
XS_OFF = 0
YS_OFF = T * 4
TAB_OFF = T * 6
TAB_ROW = 5000

def srd(a, d, base_lo, base_hi, size):
    a(f'''
    s_mov_b32 s{d}, {base_lo}
    s_mov_b32 s{d+1}, {base_hi}
    s_mov_b32 s{d+2}, {size}
    s_mov_b32 s{d+3}, 0x00020000
    ''')

def srd_add(a, d, ptr, off_sreg, size):
    a(f'''
    s_add_u32 s{d}, s{ptr}, {off_sreg}
    s_addc_u32 s{d+1}, s{ptr+1}, 0
    s_mov_b32 s{d+2}, {size}
    s_mov_b32 s{d+3}, 0x00020000
    ''')

def wave_scan(a, v):
    for ctl in ['row_shr:1', 'row_shr:2', 'row_shr:4', 'row_shr:8']:
        a('s_nop 1')
        a(f'v_add_u32_dpp v{v}, v{v}, v{v} {ctl} row_mask:0xf bank_mask:0xf')
    a('s_nop 1')
    a(f'v_add_u32_dpp v{v}, v{v}, v{v} row_bcast:15 row_mask:0xa bank_mask:0xf')
    a('s_nop 1')
    a(f'v_add_u32_dpp v{v}, v{v}, v{v} row_bcast:31 row_mask:0xc bank_mask:0xf')

def gen_k1(a):
    VO = 8; VI = 48; VA = 88; TMP = 108
    a.label('k1_kernel')
    a(f'''
    s_cmp_ge_u32 s2, {NCH}
    s_cbranch_scc1 k1_end
    s_load_dwordx4 s[4:7], s[0:1], 8
    s_load_dwordx2 s[8:9], s[0:1], 32
    s_load_dwordx2 s[10:11], s[0:1], 104
    v_lshlrev_b32 v1, 3, v0
    v_mov_b32 v2, 0
    v_mov_b32 v3, 0
    ds_write_b64 v1, v[2:3]
    v_lshlrev_b32 v4, 4, v0
    v_mov_b32 v6, 1
    s_mul_i32 s36, s2, {CH*4}
    s_mul_i32 s37, s2, {CH*2}
    s_mul_i32 s38, s2, {TAB_ROW}
    s_waitcnt lgkmcnt(0)
    ''')
    srd_add(a, 12, 4, 's36', CH*4)
    srd_add(a, 16, 6, 's36', CH*4)
    srd_add(a, 20, 8, 's37', CH*2)
    srd_add(a, 24, 10, 's36', CH*4)
    a(f's_add_u32 s37, s37, {YS_OFF}')
    srd_add(a, 28, 10, 's37', CH*2)
    a(f's_add_u32 s38, s38, {TAB_OFF}')
    srd_add(a, 32, 10, 's38', TAB_ROW)
    for k in range(10):
        a(f's_mov_b32 s{40+k}, {k*16384}')
        a(f's_mov_b32 s{50+k}, {k*8192}')
    for k in range(10):
        a(f'buffer_load_dwordx4 {vr(VO+4*k,4)}, v4, s[16:19], s{40+k} offen')
        a(f'buffer_load_dwordx4 {vr(VI+4*k,4)}, v4, s[12:15], s{40+k} offen')
        a(f'buffer_load_dwordx2 {vr(VA+2*k,2)}, v1, s[20:23], s{50+k} offen')
    a('s_mov_b32 s39, 0xfffffb00')
    a('s_movk_i32 s60, 1000')
    a('s_mov_b32 s61, 0x05040100')
    a('s_mov_b32 s62, 0x07060100')
    a('s_barrier')
    for k in range(10):
        a(f's_waitcnt vmcnt({27-3*k})')
        for i in range(4):
            e = 4*k+i
            t0 = TMP + 3*i; t1 = t0+1; t2 = t0+2
            a(f'v_lshrrev_b32 v{t0}, 8, v{VO+e}')
            a(f'v_lshrrev_b32 v{t1}, 16, v{VI+e}')
            a(f'v_mul_u32_u24 v{t0}, 52429, v{t0}')
            a(f'v_perm_b32 v{VI+e}, v{VA+e//2}, v{VI+e}, s{61 + (e % 2)}')
            a(f'v_lshrrev_b32 v{t0}, 18, v{t0}')
            a(f'v_mad_i32_i24 v{t2}, v{t0}, s39, v{VO+e}')
            a(f'v_lshlrev_b32 v{t0}, 2, v{t0}')
            a(f'v_mad_u32_u24 v{VO+e}, v{t1}, s60, v{t0}')
            a(f'v_lshrrev_b32 v{t1}, 4, v{t2}')
            a(f'ds_add_u32 v{VO+e}, v6')
            a(f'v_mad_u32_u24 v{t2}, v{t1}, 48, v{t2}')
            if e % 2 == 1:
                a(f'v_lshl_or_b32 v{VA+e//2}, v{t2}, 16, v{t2-3}')
    a('''
    s_waitcnt lgkmcnt(0)
    s_barrier
    ''')
    C0 = TMP; C1 = TMP+1; S = TMP+2; INC = TMP+3; W = TMP+4; U = TMP+5; U2 = TMP+6
    a(f'''
    ds_read_b64 v[{C0}:{C1}], v1
    v_lshrrev_b32 v{W}, 6, v0
    v_lshlrev_b32 v{U}, 2, v{W}
    v_add_u32 v{U}, 16384, v{U}
    s_waitcnt lgkmcnt(0)
    v_add_u32 v{S}, v{C0}, v{C1}
    v_mov_b32 v{INC}, v{S}
    ''')
    wave_scan(a, INC)
    a(f'''
    s_mov_b32 exec_lo, 0
    s_mov_b32 exec_hi, 0x80000000
    ds_write_b32 v{U}, v{INC}
    s_mov_b64 exec, -1
    s_waitcnt lgkmcnt(0)
    s_barrier
    v_and_b32 v{U}, 15, v0
    v_lshlrev_b32 v{U2}, 2, v{U}
    ds_read_b32 v{U2}, v{U2} offset:16384
    v_cmp_lt_u32 vcc, v{U}, v{W}
    s_waitcnt lgkmcnt(0)
    s_nop 0
    v_cndmask_b32 v{U2}, 0, v{U2}, vcc
    ''')
    for ctl in ['row_shr:1', 'row_shr:2', 'row_shr:4', 'row_shr:8']:
        a('s_nop 1')
        a(f'v_add_u32_dpp v{U2}, v{U2}, v{U2} {ctl} row_mask:0xf bank_mask:0xf')
    a(f'''
    s_nop 1
    v_readlane_b32 s3, v{U2}, 15
    v_sub_u32 v{INC}, v{INC}, v{S}
    s_nop 0
    v_add_u32 v{TMP+8}, s3, v{INC}
    v_add_u32 v{TMP+9}, v{TMP+8}, v{C0}
    ds_write_b64 v1, v[{TMP+8}:{TMP+9}]
    v_lshl_or_b32 v{TMP+10}, v{C0}, 16, v{TMP+8}
    v_lshl_or_b32 v{TMP+11}, v{C1}, 16, v{TMP+9}
    buffer_store_dwordx2 v[{TMP+10}:{TMP+11}], v1, s[32:35], 0 offen
    s_waitcnt lgkmcnt(0)
    s_barrier
    ''')
    for e in range(40):
        a(f'ds_add_rtn_u32 v{VO+e}, v{VO+e}, v6')
    a(f'''
    s_waitcnt lgkmcnt(0)
    s_barrier
    ''')
    for e in range(40):
        t = TMP + (e % 2)
        a(f'v_lshlrev_b32 v{t}, 2, v{VO+e}')
        a(f'ds_write_b32 v{t}, v{VI+e}')
    a(f'''
    s_waitcnt lgkmcnt(0)
    s_barrier
    v_add_u32 v5, 0x10000, v4
    v_add_u32 v7, 0x20000, v4
    ''')
    for k in range(10):
        base = ['v4', 'v5', 'v7'][k // 4]
        a(f'ds_read_b128 {vr(VI+4*k,4)}, {base} offset:{(k%4)*16384}')
    for k in range(10):
        a(f's_waitcnt lgkmcnt({min(9-k, 15)})')
        a(f'buffer_store_dwordx4 {vr(VI+4*k,4)}, v4, s[24:27], s{40+k} offen')
    a('s_barrier')
    for e in range(40):
        t = TMP + (e % 2)
        a(f'v_lshlrev_b32 v{t}, 1, v{VO+e}')
        if e % 2 == 0:
            a(f'ds_write_b16 v{t}, v{VA+e//2}')
        else:
            a(f'ds_write_b16_d16_hi v{t}, v{VA+e//2}')
    a(f'''
    s_waitcnt lgkmcnt(0)
    s_barrier
    ''')
    for k in range(5):
        base = ['v4', 'v5'][k // 4]
        a(f'ds_read_b128 {vr(VO+4*k,4)}, {base} offset:{(k%4)*16384}')
    for k in range(5):
        a(f's_waitcnt lgkmcnt({4-k})')
        a(f'buffer_store_dwordx4 {vr(VO+4*k,4)}, v4, s[28:31], s{40+k} offen')
    a.label('k1_end')
    a('s_endpgm')

CAP = 160
NT = 80
SETN = NT * CAP
CNT = 0
FLAG = 640
K8 = 1024
KA = K8 + 2*SETN
STG = KA + 2*SETN*4
STGW = 1280
EPI = STG + 16*STGW
E_CEN = EPI + 2560
E_DIST = E_CEN + 1024
K2_LDS = E_DIST + 2560

vL4, vStgW, vStg, vPre8, vXrd, vPar, vD = range(7)
def PA(s): return 7 + s
def PO(s): return 12 + s
T0, T1, TX = 17, 18, 19
B1, B2 = 20, 24
def G(u): return 28 + 4*u
H, Ca, Cb, MD = 48, 52, 56, 60
def ACC(t, l): return 68 + 12*t + 4*l
SM = 4; SX = 8; SY = 12
sN = [16, 17, 18, 19, 20]
sNn = [21, 22, 23, 24, 25]
sMk = [66, 68, 70, 72, 74]
sP0 = 64
PLEN = 63
sXB, sDelta, sCntOff, sR, sW, sBk, sFail, sMaxLen, sT0, sT1, sT2, sLim = range(31, 43)
sK8000, sF1, sF2, sF3, sChunk0, sTabOff, sCntRd = range(43, 50)
sDM = 50
sMp = 52
sTP = 54
STAB = 56
sI2P = 60
sJ = 61; sSt = 62; sRem = 63

class K2:
    def __init__(self, a):
        self.a = a
        self.ool = []
        self.uid = 0

    def new(self):
        self.uid += 1
        return self.uid

    def produce(self, pa, po, smk, t0=T0, t1=T1, a=None):
        a = a or self.a
        u = self.new()
        a(f'''
        s_mov_b64 exec, s[{smk}:{smk+1}]
        v_bfe_u32 v{t0}, v{po}, 4, 12
        v_mov_b32 v{t1}, 1
        v_add_u32 v{t0}, s{sCntOff}, v{t0}
        ds_add_rtn_u32 v{t1}, v{t0}, v{t1} offset:{CNT}
        s_waitcnt lgkmcnt(0)
        v_cmp_le_u32 vcc, {CAP}, v{t1}
        s_cbranch_vccnz k2_ovf{u}
        ''')
        a.label(f'k2_ovb{u}')
        a(f'''
        v_mad_u32_u24 v{t1}, v{t0}, 40, v{t1}
        ds_write_b8 v{t1}, v{po} offset:{K8}
        v_lshlrev_b32 v{t1}, 2, v{t1}
        ds_write_b32 v{t1}, v{pa} offset:{KA}
        s_mov_b64 exec, -1
        ''')
        o = Asm()
        o.label(f'k2_ovf{u}')
        o(f'''
        s_andn2_b64 exec, exec, vcc
        s_mov_b32 s{sFail}, 1
        s_branch k2_ovb{u}
        ''')
        self.ool.append(o)

    def cos3(self, a, blocks):
        for (ar, x, y, z) in blocks:
            a(f'v_and_b32 v{ar}, 0xffff0000, v{ar}')
        for (ar, x, y, z) in blocks:
            a(f'v_mul_f32 v{x}, s{sF1}, v{ar}')
            a(f'v_mul_f32 v{y}, s{sF2}, v{ar}')
            a(f'v_mul_f32 v{z}, s{sF3}, v{ar}')
        for (ar, x, y, z) in blocks:
            for r in (x, y, z):
                a(f'v_cvt_pk_bf16_f32 v{r}, 0, v{r}')
        for (ar, x, y, z) in blocks:
            for r in (x, y, z):
                a(f'v_mul_f32 v{r}, s{sI2P}, v{r}')
        for (ar, x, y, z) in blocks:
            for r in (x, y, z):
                a(f'v_fract_f32 v{r}, v{r}')
        for (ar, x, y, z) in blocks:
            for r in (x, y, z):
                a(f'v_cos_f32 v{r}, v{r}')

    def prestep(self, t):
        a = self.a
        u = self.new()
        n = sN[t]
        A0, A1, O0, O1 = 49, 50, 51, 52
        b0 = (A0, 53, 54, 55); b1 = (A1, 56, 57, 58)
        a(f'''
        s_cmp_eq_u32 s{n}, 0
        s_cbranch_scc1 k2_pre_end{u}
        v_lshlrev_b32 v48, 2, v{vPre8}
        ds_read_u8 v{O0}, v{vPre8} offset:{K8 + t*CAP}
        ds_read_u8 v{O1}, v{vPre8} offset:{K8 + t*CAP + 64}
        ds_read_b32 v{A0}, v48 offset:{KA + t*CAP*4}
        ds_read_b32 v{A1}, v48 offset:{KA + t*CAP*4 + 256}
        s_lshl_b32 s{sT0}, s{n}, 2
        s_sub_u32 s{sT1}, s{sT0}, 256
        v_cmp_gt_i32 vcc, s{sT0}, v{vL4}
        v_cmp_gt_i32 s[{sP0}:{sP0+1}], s{sT1}, v{vL4}
        s_waitcnt lgkmcnt(2)
        v_cndmask_b32 v{O0}, 16, v{O0}, vcc
        v_cndmask_b32 v{O1}, 16, v{O1}, s[{sP0}:{sP0+1}]
        v_lshrrev_b32 v{O0}, v{O0}, s{sK8000}
        v_lshrrev_b32 v{O1}, v{O1}, s{sK8000}
        ds_write_b16 v{vStgW}, v{O0} offset:960
        ds_write_b16 v{vStgW}, v{O1} offset:{960+128}
        s_waitcnt lgkmcnt(2)
        ''')
        self.cos3(a, [b0, b1])
        a(f'''
        v_cvt_pk_bf16_f32 v53, v53, v54
        v_cvt_pk_bf16_f32 v56, v56, v57
        v_cvt_pk_bf16_f32 v55, v55, v55
        v_cvt_pk_bf16_f32 v58, v58, v58
        ds_write_b16 v{vStgW}, v53 offset:0
        ds_write_b16_d16_hi v{vStgW}, v53 offset:320
        ds_write_b16 v{vStgW}, v55 offset:640
        ds_write_b16 v{vStgW}, v56 offset:128
        ds_write_b16_d16_hi v{vStgW}, v56 offset:{320+128}
        ds_write_b16 v{vStgW}, v58 offset:{640+128}
        s_cmp_gt_u32 s{n}, 128
        s_cbranch_scc1 k2_pre2_{u}
        ''')
        a.label(f'k2_pre_end{u}')
        o = Asm()
        o.label(f'k2_pre2_{u}')
        o(f'''
        s_mov_b32 exec_hi, 0
        ds_read_u8 v{O0}, v{vPre8} offset:{K8 + t*CAP + 128}
        ds_read_b32 v{A0}, v48 offset:{KA + t*CAP*4 + 512}
        s_sub_u32 s{sT1}, s{sT0}, 512
        v_cmp_gt_i32 vcc, s{sT1}, v{vL4}
        s_waitcnt lgkmcnt(0)
        s_nop 0
        v_cndmask_b32 v{O0}, 16, v{O0}, vcc
        v_lshrrev_b32 v{O0}, v{O0}, s{sK8000}
        ds_write_b16 v{vStgW}, v{O0} offset:{960+256}
        ''')
        self.cos3(o, [b0])
        o(f'''
        s_nop 0
        v_cvt_pk_bf16_f32 v53, v53, v54
        v_cvt_pk_bf16_f32 v55, v55, v55
        ds_write_b16 v{vStgW}, v53 offset:256
        ds_write_b16_d16_hi v{vStgW}, v53 offset:{320+256}
        ds_write_b16 v{vStgW}, v55 offset:{640+256}
        s_mov_b64 exec, -1
        s_branch k2_pre_end{u}
        ''')
        self.ool.append(o)

    def sstep_a(self, a, g, u):
        a(f'''
        v_mfma_f32_16x16x32_bf16 {vr(MD,4)}, {vr(g,4)}, {vr(B1,4)}, 0
        v_mfma_f32_16x16x32_bf16 {vr(MD+4,4)}, {vr(g,4)}, {vr(B2,4)}, 0
        ds_read_b128 {vr(H,4)}, v{vStg} offset:{960 + 64*u}
        ds_read_b128 {vr(Ca,4)}, v{vStg} offset:{64*u}
        ds_read_b128 {vr(Cb,4)}, v{vStg} offset:{320 + 64*u}
        ''')

    def sstep_masks(self, a):
        for p in range(4):
            a(f'v_pk_lshlrev_b16 v{H+p}, v{vPre8}, v{H+p} op_sel_hi:[0,1]')
        for p in range(4):
            a(f'v_pk_ashrrev_i16 v{H+p}, 15, v{H+p} op_sel_hi:[0,1]')

    def sstep_cvt(self, a):
        a(f'''
        v_cvt_pk_bf16_f32 v{MD}, v{MD}, v{MD+1}
        v_cvt_pk_bf16_f32 v{MD+1}, v{MD+2}, v{MD+3}
        v_cvt_pk_bf16_f32 v{MD+2}, v{MD+4}, v{MD+5}
        v_cvt_pk_bf16_f32 v{MD+3}, v{MD+6}, v{MD+7}
        ''')

    def sstep_b(self, a, t, u, waited):
        if not waited:
            a('s_waitcnt lgkmcnt(2)')
        self.sstep_masks(a)
        self.sstep_cvt(a)
        a(f'ds_read_b128 {vr(MD+4,4)}, v{vStg} offset:{640 + 64*u}')
        if not waited:
            a('s_waitcnt lgkmcnt(1)')
        for p in range(4):
            a(f'v_and_b32 v{Ca+p}, v{H+p}, v{Ca+p}')
        for p in range(4):
            a(f'v_and_b32 v{Cb+p}, v{H+p}, v{Cb+p}')
        a(f'v_mfma_f32_16x16x32_bf16 {vr(ACC(t,0),4)}, {vr(MD,4)}, {vr(Ca,4)}, {vr(ACC(t,0),4)}')
        a('s_waitcnt lgkmcnt(0)')
        a(f'v_and_b32 v{MD+4}, v{H}, v{MD+4}')
        a(f'v_mfma_f32_16x16x32_bf16 {vr(ACC(t,1),4)}, {vr(MD,4)}, {vr(Cb,4)}, {vr(ACC(t,1),4)}')
        for p in range(1, 4):
            a(f'v_and_b32 v{MD+4+p}, v{H+p}, v{MD+4+p}')
        a('s_nop 1')
        a(f'v_mfma_f32_16x16x32_bf16 {vr(ACC(t,2),4)}, {vr(MD,4)}, {vr(MD+4,4)}, {vr(ACC(t,2),4)}')

    def issue_piece(self, j, stage, a=None, vd=vD, pa=None, po=None, smk=None):
        a = a or self.a
        pa = PA(stage) if pa is None else pa
        po = PO(stage) if po is None else po
        smk = sMk[stage] if smk is None else smk
        a(f'''
        v_readlane_b32 s{sT0}, v{vd}, {j}
        s_and_b32 s{sT1}, s{sT0}, 0xffff
        s_lshr_b32 s{sT0}, s{sT0}, 16
        s_add_u32 s{sT1}, s{sT1}, s{sChunk0}
        s_max_u32 s{sMaxLen}, s{sMaxLen}, s{sT0}
        s_add_u32 s{sT1}, s{sT1}, {j*16*CH}
        s_min_u32 s{sT0}, s{sT0}, {PLEN}
        s_lshl_b32 s{sT2}, s{sT1}, 2
        s_bfm_b64 s[{smk}:{smk+1}], s{sT0}, 0
        s_lshl_b32 s{sT1}, s{sT1}, 1
        s_or_b64 exec, s[{smk}:{smk+1}], 1
        buffer_load_dword v{pa}, v{vL4}, s[{SX}:{SX+3}], s{sT2} offen
        buffer_load_ushort v{po}, v{vStgW}, s[{SY}:{SY+3}], s{sT1} offen
        s_mov_b64 exec, -1
        ''')

    def nops(self, s):
        s %= 25
        n = 1
        if s >= 20 or s <= 10: n += 2
        if s == 11: n += 1
        return n

    def long_cleanup(self, a, rsel):
        u = self.new()
        a(f'''
        s_cmp_le_u32 s{sMaxLen}, {PLEN}
        s_cbranch_scc1 k2_lc_end{u}
        s_branch k2_lc{u}
        ''')
        a.label(f'k2_lc_end{u}')
        a(f's_mov_b32 s{sMaxLen}, 0')
        o = Asm()
        o.label(f'k2_lc{u}')
        o(f'''
        s_mov_b32 s{sJ}, 0
        ''')
        o.label(f'k2_lcj{u}')
        o(f'''
        s_lshl_b32 s{sT0}, s{sJ}, 4
        s_add_u32 s{sT0}, s{sT0}, s{sW}
        s_cmp_ge_u32 s{sT0}, {NCH}
        s_cbranch_scc1 k2_lc_end{u}
        s_mul_i32 s{sT1}, s{sT0}, {TAB_ROW}
        s_add_u32 s{sT2}, s{sR}, {rsel}
        s_mul_i32 s{sT2}, s{sT2}, 1000
        s_add_u32 s{sT1}, s{sT1}, s{sT2}
        s_lshl_b32 s{sT2}, s{sBk}, 2
        s_add_u32 s{sT1}, s{sT1}, s{sT2}
        s_load_dword s{sRem}, s[{sTP}:{sTP+1}], s{sT1}
        s_mul_i32 s{sSt}, s{sT0}, {CH}
        s_waitcnt lgkmcnt(0)
        s_and_b32 s{sT0}, s{sRem}, 0xffff
        s_lshr_b32 s{sRem}, s{sRem}, 16
        s_add_u32 s{sSt}, s{sSt}, s{sT0}
        ''')
        o.label(f'k2_lcp{u}')
        o(f'''
        s_cmp_le_u32 s{sRem}, {PLEN}
        s_cbranch_scc1 k2_lcn{u}
        s_sub_u32 s{sRem}, s{sRem}, {PLEN}
        s_add_u32 s{sSt}, s{sSt}, {PLEN}
        s_min_u32 s{sT0}, s{sRem}, {PLEN}
        s_bfm_b64 s[{sMk[0]}:{sMk[0]+1}], s{sT0}, 0
        s_lshl_b32 s{sT2}, s{sSt}, 2
        s_lshl_b32 s{sT1}, s{sSt}, 1
        s_mov_b64 exec, s[{sMk[0]}:{sMk[0]+1}]
        buffer_load_dword v{PA(0)}, v{vL4}, s[{SX}:{SX+3}], s{sT2} offen
        buffer_load_ushort v{PO(0)}, v{vStgW}, s[{SY}:{SY+3}], s{sT1} offen
        s_mov_b64 exec, -1
        s_waitcnt vmcnt(0)
        ''')
        self.produce(PA(0), PO(0), sMk[0], a=o)
        o(f's_branch k2_lcp{u}')
        o.label(f'k2_lcn{u}')
        o(f'''
        s_add_u32 s{sJ}, s{sJ}, 1
        s_cmp_lt_u32 s{sJ}, 16
        s_cbranch_scc1 k2_lcj{u}
        s_branch k2_lc_end{u}
        ''')
        self.ool.append(o)

    def slot(self, t, u):
        a = self.a
        s = 5*t + u
        W = sum(self.nops(s - k) for k in range(1, 5))
        a(f'; ======== slot {s} (t={t},u={u})')
        a(f's_waitcnt vmcnt({W})')
        if u == 0 and t < 4:
            a(f'ds_read_u16 v{TX}, v{vXrd} offset:{KA + (t+1)*CAP*4}')
            self.prestep(t)
        elif u == 0:
            self.prestep(t)
            self.long_cleanup(a, 1)
            uu = self.new()
            a(f'''
            s_cmp_eq_u32 s{sFail}, 0
            s_cbranch_scc1 k2_nf{uu}
            v_mov_b32 v48, {FLAG}
            v_mov_b32 v49, 1
            ds_write_b32 v48, v49
            ''')
            a.label(f'k2_nf{uu}')
            a(f'''
            s_waitcnt lgkmcnt(0)
            s_barrier
            ''')
            a.label('k2_entry')
            a(f'''
            s_mov_b64 exec, 31
            v_add_u32 v48, s{sCntRd}, v{vL4}
            v_mov_b32 v50, 0
            ds_read_b32 v49, v48 offset:{CNT}
            ds_write_b32 v48, v50 offset:{CNT}
            s_mov_b64 exec, -1
            v_add_u32 v{vXrd}, s{sDelta}, v{vXrd}
            s_add_u32 s{sXB}, s{sXB}, s{sDelta}
            s_add_u32 s{sMp}, s{sMp}, {65536*32}
            s_addc_u32 s{sMp+1}, s{sMp+1}, 0
            s_mov_b32 s{SM}, s{sMp}
            s_mov_b32 s{SM+1}, s{sMp+1}
            s_add_u32 s{sT0}, s{sR}, 1
            s_lshl_b32 s{sT0}, s{sT0}, 21
            s_sub_u32 s{sT0}, {E*32}, s{sT0}
            s_max_i32 s{sT0}, s{sT0}, 0
            s_min_u32 s{SM+2}, s{sT0}, {65536*32}
            ds_read_u16 v{TX}, v{vXrd} offset:{KA}
            s_waitcnt lgkmcnt(1)
            v_min_u32 v49, {CAP}, v49
            s_nop 0
            ''')
            for i in range(5):
                a(f'v_readlane_b32 s{sNn[i]}, v49, {i}')
        else:
            tn = (t + 1) % 5
            a(f'ds_read_u16 v{TX}, v{vXrd} offset:{KA + tn*CAP*4 + u*128}')
        uid = self.new()
        prod = s < 16
        a(f'''
        s_cmp_le_u32 s{sN[t]}, {32*u}
        s_cbranch_scc1 k2_skip{uid}
        ''')
        self.sstep_a(a, G(u), u)
        if prod:
            self.produce(PA(u), PO(u), sMk[u])
            self.sstep_b(a, t, u, True)
        else:
            self.sstep_b(a, t, u, False)
        if prod:
            o = Asm()
            o.label(f'k2_skip{uid}')
            self.produce(PA(u), PO(u), sMk[u], a=o)
            o(f's_branch k2_join{uid}')
            self.ool.append(o)
            a.label(f'k2_join{uid}')
        else:
            a.label(f'k2_skip{uid}')
        ng = sN[t+1] if t < 4 else sNn[0]
        if u == 0:
            a(f's_lshl2_add_u32 s{sLim}, s{ng}, s{sXB}')
        else:
            a(f's_sub_u32 s{sLim}, s{sLim}, 128')
        a(f'''
        s_waitcnt lgkmcnt(0)
        v_cmp_gt_i32 vcc, s{sLim}, v{vXrd}
        v_lshl_add_u32 v{TX}, v{TX}, 5, v{vPar}
        s_or_b64 exec, vcc, 1
        buffer_load_dwordx4 {vr(G(u),4)}, v{TX}, s[{SM}:{SM+3}], 0 offen
        s_mov_b64 exec, -1
        ''')
        if s >= 20:
            self.issue_piece(s - 20, u)
        elif s <= 10:
            self.issue_piece(s + 5, u)
        elif s == 11:
            a(f'''
            s_add_u32 s{sT0}, s{sR}, 2
            s_mul_i32 s{sT2}, s{sT0}, 1000
            s_add_u32 s{sT2}, s{sT2}, s{sTabOff}
            s_cmp_lt_u32 s{sT0}, {R}
            s_cselect_b32 s{sT1}, 0, 0x40000000
            s_cselect_b32 s{sT2}, s{sT2}, 0
            v_mul_u32_u24 v{T0}, 20000, v{vL4}
            v_mov_b32 v{vD}, 0
            v_add_u32 v{T0}, s{sT1}, v{T0}
            s_mov_b64 exec, s[{sDM}:{sDM+1}]
            buffer_load_dword v{vD}, v{T0}, s[{STAB}:{STAB+3}], s{sT2} offen
            s_mov_b64 exec, -1
            ''')

def rnd(a, v, src=None):
    a(f'v_cvt_pk_bf16_f32 v{v}, 0, v{src if src is not None else v}')

def gen_k2(a):
    k = K2(a)
    a.label('k2_kernel')
    a(f'''
    s_cmp_ge_u32 s2, {NB}
    s_cbranch_scc1 k2_end
    s_mov_b32 s{sBk}, s2
    s_load_dwordx2 s[{sMp}:{sMp+1}], s[0:1], 0
    s_load_dwordx2 s[64:65], s[0:1], 104
    s_load_dwordx2 s[66:67], s[0:1], 24
    s_load_dwordx2 s[68:69], s[0:1], 40
    s_load_dwordx2 s[70:71], s[0:1], 48
    s_load_dwordx2 s[72:73], s[0:1], 56
    s_load_dwordx2 s[74:75], s[0:1], 64
    s_load_dwordx2 s[76:77], s[0:1], 72
    s_load_dwordx2 s[78:79], s[0:1], 80
    v_lshrrev_b32 v100, 6, v0
    v_mov_b32 v104, v0               ; tid
    v_and_b32 v101, 63, v0           ; lane
    v_readfirstlane_b32 s{sW}, v100
    v_and_b32 v102, 15, v101         ; e / j
    v_lshrrev_b32 v103, 4, v101      ; q
    s_waitcnt lgkmcnt(0)
    ''')
    LANE, EE, QQ, TID = 101, 102, 103, 104
    a(f's_add_u32 s80, s64, {XS_OFF}\ns_addc_u32 s81, s65, 0')
    srd(a, SX, 's80', 's81', T*4)
    a(f'''
    s_mul_i32 s{sT0}, s{sW}, {STGW}
    s_add_u32 s{sT0}, s{sT0}, {STG}
    s_add_u32 s80, s64, {YS_OFF}
    s_addc_u32 s81, s65, 0
    s_sub_u32 s80, s80, s{sT0}
    s_subb_u32 s81, s81, 0
    ''')
    srd(a, SY, 's80', 's81', T*2 + K2_LDS)
    a(f's_add_u32 s{sTP}, s64, {TAB_OFF}\ns_addc_u32 s{sTP+1}, s65, 0')
    srd(a, STAB, f's{sTP}', f's{sTP+1}', NCH*TAB_ROW)
    a(f'''
    v_lshlrev_b32 v{vL4}, 2, v{LANE}
    v_lshl_add_u32 v{vStgW}, v{LANE}, 1, s{sT0}
    v_lshl_add_u32 v{vStg}, v{QQ}, 4, s{sT0}
    s_mul_i32 s{sT1}, s{sW}, 800
    s_add_u32 s{sT1}, s{sT1}, {SETN}
    v_add_u32 v{vPre8}, s{sT1}, v{LANE}
    s_lshl_b32 s{sXB}, s{sT1}, 2
    v_lshrrev_b32 v105, 2, v{EE}
    v_lshlrev_b32 v105, 3, v105            ; 8*(e>>2)
    v_and_b32 v106, 3, v{EE}
    v_add_u32 v105, v105, v106
    v_lshrrev_b32 v106, 5, v{LANE}
    v_lshl_add_u32 v105, v106, 2, v105     ; ent
    v_lshl_add_u32 v{vXrd}, v105, 2, s{sXB}
    v_and_b32 v{vPar}, 1, v{QQ}
    v_lshlrev_b32 v{vPar}, 4, v{vPar}
    s_mov_b32 s{sDelta}, {(-SETN*4) & 0xffffffff}
    s_mov_b32 s{sCntOff}, 0
    s_mul_i32 s{sCntRd}, s{sW}, 20
    s_mov_b32 s{sR}, -1
    s_mov_b32 s{sFail}, 0
    s_mov_b32 s{sMaxLen}, 0
    s_mov_b32 s{sK8000}, 0x8000
    s_mov_b32 s{sI2P}, 0x3e22f983
    s_mul_i32 s{sChunk0}, s{sW}, {CH}
    s_mul_i32 s{sTabOff}, s{sW}, {TAB_ROW}
    s_lshl_b32 s{sT1}, s{sBk}, 2
    s_add_u32 s{sTabOff}, s{sTabOff}, s{sT1}
    s_cmp_lt_u32 s{sW}, {NCH - 240}
    s_movk_i32 s{sDM}, 0x7fff
    s_cbranch_scc0 k2_dm
    s_mov_b32 s{sDM}, 0xffff
k2_dm:
    s_mov_b32 s{sDM+1}, 0
    ''')
    a(f'''
    v_mov_b32 v107, 0
    v_mov_b32 v{vD}, 0
    v_mul_u32_u24 v108, 20000, v{vL4}
    s_add_u32 s{sT1}, s{sTabOff}, 1000
    s_mov_b64 exec, s[{sDM}:{sDM+1}]
    buffer_load_dword v107, v108, s[{STAB}:{STAB+3}], s{sTabOff} offen
    buffer_load_dword v{vD}, v108, s[{STAB}:{STAB+3}], s{sT1} offen
    s_mov_b64 exec, -1
    ''')
    a(f'''
    v_lshlrev_b32 v109, 2, v{TID}
    v_mov_b32 v110, 0
    v_cmp_gt_u32 vcc, 176, v{TID}
    s_and_saveexec_b64 s[80:81], vcc
    ds_write_b32 v109, v110
    s_mov_b64 exec, s[80:81]
    ''')
    srd(a, 84, 's76', 's77', 16*16*2)
    a(f'''
    v_and_b32 v111, 1, v{QQ}
    v_lshlrev_b32 v111, 8, v111             ; (q&1)*8 rows * 32 B
    v_lshl_add_u32 v111, v{EE}, 1, v111
    ''')
    for i in range(8):
        a(f'buffer_load_ushort v{112+i}, v111, s[84:87], 0 offen offset:{i*32}')
    srd(a, 88, 's70', 's71', 6)
    a(f'''
    v_lshlrev_b32 v120, 1, v{LANE}
    buffer_load_ushort v121, v120, s[88:91], 0 offen
    ''')
    srd(a, 92, 's66', 's67', E*2)
    a(f'''
    s_mul_i32 s{sT1}, s{sBk}, {BK*2}
    v_cmp_gt_u32 vcc, {BK//2}, v{TID}
    s_and_saveexec_b64 s[80:81], vcc
    buffer_load_dword v122, v109, s[92:95], s{sT1} offen
    s_mov_b64 exec, s[80:81]
    ''')
    a('s_waitcnt vmcnt(10)')
    PAx = lambda j: 28 + j
    POx = lambda j: 44 + j
    for j in range(16):
        k.issue_piece(j, 0, vd=107, pa=PAx(j), po=POx(j), smk=80)
    a('s_waitcnt vmcnt(32)')
    a(f'''
    v_lshlrev_b32 v121, 16, v121
    v_cmp_gt_u32 vcc, {BK//2}, v{TID}
    s_and_saveexec_b64 s[80:81], vcc
    ds_write_b32 v109, v122 offset:0
    s_mov_b64 exec, s[80:81]
    ''')
    a.lines.pop(); a.lines.pop()
    a(f'''
    v_add_u32 v123, {E_DIST}, v109
    ds_write_b32 v123, v122
    s_mov_b64 exec, s[80:81]
    v_readlane_b32 s{sF1}, v121, 0
    v_readlane_b32 s{sF2}, v121, 1
    v_readlane_b32 s{sF3}, v121, 2
    ''')
    for i in range(4):
        a(f'v_lshl_or_b32 v{112+2*i}, v{113+2*i}, 16, v{112+2*i}')
    a(f'v_cmp_gt_u32 vcc, 32, v{LANE}')
    a('s_nop 1')
    for i in range(4):
        a(f'v_cndmask_b32 v{B1+i}, 0, v{112+2*i}, vcc')
    a(f'v_cmp_le_u32 vcc, 32, v{LANE}')
    a('s_nop 1')
    for i in range(4):
        a(f'v_cndmask_b32 v{B2+i}, 0, v{112+2*i}, vcc')
    a(f'''
    s_cmp_lg_u32 s{sW}, 0
    s_cbranch_scc1 k2_noepi
    ''')
    srd(a, 84, 's74', 's75', 24*16*2)
    srd(a, 88, 's72', 's73', 8*16*2)
    srd(a, 92, 's78', 's79', 16*16*2)
    srd(a, 96, 's68', 's69', 16)
    a(f'''
    v_mul_u32_u24 v105, 384, v{QQ}
    v_lshl_add_u32 v105, v{EE}, 1, v105     ; q*384 + 2j
    v_lshlrev_b32 v106, 7, v{QQ}
    v_lshl_add_u32 v106, v{EE}, 1, v106     ; q*128 + 2j
    v_lshlrev_b32 v108, 3, v{QQ}            ; q*8
    ''')
    for l in range(3):
        for i in range(4):
            a(f'buffer_load_ushort v{68+4*l+i}, v105, s[84:87], 0 offen offset:{i*96+l*32}')
    for i in range(4):
        a(f'buffer_load_ushort v{80+i}, v106, s[88:91], 0 offen offset:{i*32}')
    for i in range(4):
        a(f'buffer_load_ushort v{84+i}, v106, s[92:95], 0 offen offset:{i*32}')
    for i in range(4):
        a(f'buffer_load_ushort v{88+i}, v108, s[96:99], 0 offen offset:{i*2}')
    a(f'''
    s_waitcnt vmcnt(0)
    v_lshlrev_b32 v105, 3, v{LANE}
    v_add_u32 v105, {EPI}, v105
    v_lshlrev_b32 v106, 4, v{LANE}
    v_add_u32 v106, {E_CEN}, v106
    ''')
    for m in range(5):
        b = 68 + 4*m
        a(f'v_lshl_or_b32 v{b}, v{b+1}, 16, v{b}')
        a(f'v_lshl_or_b32 v{b+1}, v{b+3}, 16, v{b+2}')
        a(f'ds_write_b64 v105, v[{b}:{b+1}] offset:{m*512}')
    for i in range(4):
        a(f'v_lshlrev_b32 v{88+i}, 16, v{88+i}')
    a('ds_write_b128 v106, v[88:91]')
    a.label('k2_noepi')
    a(f'''
    s_waitcnt vmcnt(0) lgkmcnt(0)
    s_barrier
    ''')
    T0x = lambda j: 68 + j
    T1x = lambda j: 84 + j
    for j in range(16):
        a(f'''
        v_readlane_b32 s{sT0}, v107, {j}
        s_lshr_b32 s{sT0}, s{sT0}, 16
        s_min_u32 s{sT0}, s{sT0}, {PLEN}
        s_bfm_b64 s[{64+2*j}:{65+2*j}], s{sT0}, 0
        s_mov_b64 exec, s[{64+2*j}:{65+2*j}]
        v_bfe_u32 v{T0x(j)}, v{POx(j)}, 4, 12
        v_mov_b32 v{T1x(j)}, 1
        ds_add_rtn_u32 v{T1x(j)}, v{T0x(j)}, v{T1x(j)} offset:{CNT}
        s_mov_b64 exec, -1
        ''')
    a('s_waitcnt lgkmcnt(0)')
    for j in range(16):
        u = k.new()
        a(f'''
        s_mov_b64 exec, s[{64+2*j}:{65+2*j}]
        v_cmp_le_u32 vcc, {CAP}, v{T1x(j)}
        s_cbranch_vccnz k2_ovf{u}
        ''')
        a.label(f'k2_ovb{u}')
        a(f'''
        v_mad_u32_u24 v{T1x(j)}, v{T0x(j)}, 40, v{T1x(j)}
        ds_write_b8 v{T1x(j)}, v{POx(j)} offset:{K8}
        v_lshlrev_b32 v{T1x(j)}, 2, v{T1x(j)}
        ds_write_b32 v{T1x(j)}, v{PAx(j)} offset:{KA}
        s_mov_b64 exec, -1
        ''')
        o = Asm()
        o.label(f'k2_ovf{u}')
        o(f'''
        s_andn2_b64 exec, exec, vcc
        s_mov_b32 s{sFail}, 1
        s_branch k2_ovb{u}
        ''')
        k.ool.append(o)
    k.long_cleanup(a, 1)
    u = k.new()
    a(f'''
    s_cmp_eq_u32 s{sFail}, 0
    s_cbranch_scc1 k2_nf{u}
    v_mov_b32 v48, {FLAG}
    v_mov_b32 v49, 1
    ds_write_b32 v48, v49
    ''')
    a.label(f'k2_nf{u}')
    for r in range(28, 48):
        a(f'v_mov_b32 v{r}, 0')
    for r in range(68, 128):
        a(f'v_mov_b32 v{r}, 0')
    for i in range(5):
        a(f's_mov_b32 s{sN[i]}, 0')
    a(f'''
    s_sub_u32 s{sMp}, s{sMp}, {65536*32}
    s_subb_u32 s{sMp+1}, s{sMp+1}, 0
    s_mov_b32 s{SM+3}, 0x00020000
    s_waitcnt lgkmcnt(0)
    s_barrier
    s_branch k2_entry
    ''')
    a.label('k2_loop')
    for t in range(5):
        for u in range(5):
            k.slot(t, u)
    for i in range(5):
        a(f's_mov_b32 s{sN[i]}, s{sNn[i]}')
    a(f'''
    v_add_u32 v{vPre8}, s80, v{vPre8}
    ''')
    a.lines.pop()
    a(f'''
    s_ashr_i32 s{sT0}, s{sDelta}, 2
    s_sub_u32 s{sDelta}, 0, s{sDelta}
    v_add_u32 v{vPre8}, s{sT0}, v{vPre8}
    s_xor_b32 s{sCntOff}, s{sCntOff}, 320
    s_mul_i32 s{sCntRd}, s{sW}, 20
    s_add_u32 s{sCntRd}, s{sCntRd}, s{sCntOff}
    s_add_u32 s{sR}, s{sR}, 1
    s_cmp_lt_i32 s{sR}, {R}
    s_cbranch_scc1 k2_loop
    ''')
    a(f'''
    v_mov_b32 v48, {FLAG}
    ds_read_b32 v49, v48
    s_waitcnt lgkmcnt(0)
    v_readfirstlane_b32 s{sT0}, v49
    s_cmp_lg_u32 s{sT0}, 0
    s_cbranch_scc1 k2_slow
    ''')
    a.label('k2_epi')
    a(f'''
    s_waitcnt vmcnt(0) lgkmcnt(0)
    s_load_dwordx2 s[{sMp}:{sMp+1}], s[0:1], 0
    s_load_dwordx2 s[64:65], s[0:1], 88
    v_lshrrev_b32 v1, 2, v{vL4}            ; lane
    v_and_b32 v2, 15, v1                   ; e
    v_lshrrev_b32 v3, 4, v1                ; q
    v_lshlrev_b32 v4, 3, v1
    v_add_u32 v4, {EPI}, v4
    v_lshlrev_b32 v5, 4, v1
    v_add_u32 v5, {E_CEN}, v5
    s_mul_i32 s{sT0}, s{sW}, 80
    v_add_u32 v6, s{sT0}, v2
    v_lshlrev_b32 v7, 1, v6
    v_add_u32 v7, {E_DIST}, v7
    v_lshlrev_b32 v8, 5, v6
    v_lshl_add_u32 v8, v3, 3, v8
    s_mul_i32 s{sT1}, s{sBk}, {BK*32}
    v_add_u32 v8, s{sT1}, v8
    ''')
    for m in range(5):
        a(f'ds_read_b64 v[{10+2*m}:{11+2*m}], v4 offset:{m*512}')
    a('ds_read_b128 v[20:23], v5')
    for t in range(5):
        a(f'ds_read_u16 v{24+t}, v7 offset:{t*32}')
    a('s_waitcnt lgkmcnt(0)')
    srd(a, SM, f's{sMp}', f's{sMp+1}', E*32)
    srd(a, 68, 's64', 's65', E*32)
    for t in range(5):
        a(f'buffer_load_dwordx2 v[{30+2*t}:{31+2*t}], v8, s[{SM}:{SM+3}], 0 offen offset:{t*512}')
    a(f'''
    s_mov_b32 s{sT1}, 0xc1200000         ; -10.0
    s_mov_b32 s{sT2}, 0x3fb8aa3b         ; log2(e)
    ''')
    WS = lambda l: 10 + 2*l
    WR, WU = 16, 18
    for t in range(5):
        d = 24 + t
        x = 40
        a(f'v_lshlrev_b32 v{d}, 16, v{d}')
        for i in range(4):
            a(f'v_sub_f32 v{x+i}, v{d}, v{20+i}')
        for i in range(4):
            rnd(a, x+i)
        for i in range(4):
            a(f'v_mul_f32 v{x+i}, v{x+i}, v{x+i}')
        for i in range(4):
            rnd(a, x+i)
        for i in range(4):
            a(f'v_mul_f32 v{x+i}, s{sT1}, v{x+i}')
        for i in range(4):
            rnd(a, x+i)
        for i in range(4):
            a(f'v_mul_f32 v{x+i}, s{sT2}, v{x+i}')
        for i in range(4):
            a(f'v_exp_f32 v{x+i}, v{x+i}')
        a('s_nop 0')
        a(f'v_cvt_pk_bf16_f32 v44, v{x}, v{x+1}')
        a(f'v_cvt_pk_bf16_f32 v45, v{x+2}, v{x+3}')
        a('s_nop 1')
        for l in range(3):
            a(f'v_mfma_f32_16x16x16_bf16 {vr(48+4*l,4)}, v[{WS(l)}:{WS(l)+1}], v[44:45], 0')
        a(f'v_mfma_f32_16x16x16_bf16 {vr(60,4)}, v[{WR}:{WR+1}], v[44:45], 0')
        a('s_nop 4')
        for i in range(4):
            a(f'v_mul_f32 v{48+i}, v{48+i}, v{ACC(t,0)+i}')
        for i in range(4):
            a(f'v_fma_f32 v{48+i}, v{52+i}, v{ACC(t,1)+i}, v{48+i}')
        for i in range(4):
            a(f'v_fma_f32 v{48+i}, v{56+i}, v{ACC(t,2)+i}, v{48+i}')
        a(f'v_cvt_pk_bf16_f32 v46, v48, v49')
        a(f'v_cvt_pk_bf16_f32 v47, v50, v51')
        a('s_nop 1')
        a(f'v_mfma_f32_16x16x16_bf16 {vr(52,4)}, v[{WU}:{WU+1}], v[46:47], 0')
        for i in range(4):
            rnd(a, 60+i)
        a('s_nop 3')
        for i in range(4):
            rnd(a, 52+i)
        for i in range(4):
            a(f'v_mul_f32 v{52+i}, v{52+i}, v{60+i}')
        for i in range(4):
            rnd(a, 52+i)
        if t == 0:
            a('s_waitcnt vmcnt(0)')
        mm = 30 + 2*t
        a(f'''
        v_lshlrev_b32 v56, 16, v{mm}
        v_and_b32 v57, 0xffff0000, v{mm}
        v_lshlrev_b32 v58, 16, v{mm+1}
        v_and_b32 v59, 0xffff0000, v{mm+1}
        ''')
        for i in range(4):
            a(f'v_add_f32 v{52+i}, v{52+i}, v{56+i}')
        a(f'v_cvt_pk_bf16_f32 v{64+2*(t%2)}, v52, v53')
        a(f'v_cvt_pk_bf16_f32 v{65+2*(t%2)}, v54, v55')
        a(f'buffer_store_dwordx2 v[{64+2*(t%2)}:{65+2*(t%2)}], v8, s[68:71], 0 offen offset:{t*512}')
    a('s_endpgm')
    a.label('k2_slow')
    a(f'''
    s_waitcnt vmcnt(0) lgkmcnt(0)
    s_load_dwordx2 s[{sMp}:{sMp+1}], s[0:1], 0
    s_mov_b32 s{sR}, 0
    s_mul_i32 s80, s{sW}, 20
    s_mul_i32 s{sT0}, s{sW}, 3200
    v_lshrrev_b32 v{T0}, 2, v{vL4}
    v_and_b32 v{T1}, 15, v{T0}
    v_lshrrev_b32 v{T0}, 5, v{T0}
    v_lshrrev_b32 v{TX}, 2, v{T1}
    v_lshlrev_b32 v{TX}, 3, v{TX}
    v_and_b32 v{T1}, 3, v{T1}
    v_add_u32 v{TX}, v{TX}, v{T1}
    v_lshl_add_u32 v{TX}, v{T0}, 2, v{TX}       ; ent
    v_lshl_add_u32 v{vXrd}, v{TX}, 2, s{sT0}
    v_add_u32 v{vD}, s{sT0}, v{vL4}
    s_mov_b32 s81, s{sT0}
    v_lshrrev_b32 v{vPre8}, 2, v{vL4}
    s_waitcnt lgkmcnt(0)
    ''')
    for r in range(68, 128):
        a(f'v_mov_b32 v{r}, 0')
    a.label('k2_sl_r')
    a(f'''
    s_lshl_b32 s{sT0}, s{sR}, 21
    s_add_u32 s{SM}, s{sMp}, s{sT0}
    s_addc_u32 s{SM+1}, s{sMp+1}, 0
    s_sub_u32 s{sT0}, {E*32}, s{sT0}
    s_min_u32 s{SM+2}, s{sT0}, {65536*32}
    s_mov_b32 s{sJ}, 0
    ''')
    a.label('k2_sl_c')
    a(f'''
    s_mul_i32 s{sT1}, s{sJ}, {TAB_ROW}
    s_mul_i32 s{sT2}, s{sR}, 1000
    s_add_u32 s{sT1}, s{sT1}, s{sT2}
    s_lshl_b32 s{sT2}, s{sBk}, 2
    s_add_u32 s{sT1}, s{sT1}, s{sT2}
    s_load_dword s{sRem}, s[{sTP}:{sTP+1}], s{sT1}
    s_mul_i32 s{sSt}, s{sJ}, {CH}
    s_waitcnt lgkmcnt(0)
    s_and_b32 s{sT0}, s{sRem}, 0xffff
    s_lshr_b32 s{sRem}, s{sRem}, 16
    s_add_u32 s{sSt}, s{sSt}, s{sT0}
    ''')
    a.label('k2_sl_p')
    a(f'''
    s_cmp_eq_u32 s{sRem}, 0
    s_cbranch_scc1 k2_sl_n
    s_min_u32 s{sT0}, s{sRem}, 32
    s_sub_u32 s{sRem}, s{sRem}, s{sT0}
    s_lshl_b32 s26, s{sT0}, 2
    s_lshl_b32 s{sT2}, s{sSt}, 2
    s_lshl_b32 s{sT1}, s{sSt}, 1
    s_add_u32 s{sSt}, s{sSt}, s{sT0}
    v_mov_b32 v{PO(0)}, 0xffff
    s_bfm_b64 exec, s{sT0}, 0
    buffer_load_dword v{PA(0)}, v{vL4}, s[{SX}:{SX+3}], s{sT2} offen
    buffer_load_ushort v{PO(0)}, v{vStgW}, s[{SY}:{SY+3}], s{sT1} offen
    s_mov_b64 exec, -1
    s_waitcnt vmcnt(0)
    v_bfe_u32 v{T0}, v{PO(0)}, 4, 12
    v_subrev_u32 v{T0}, s80, v{T0}
    v_cmp_gt_u32 vcc, 20, v{T0}
    s_cbranch_vccz k2_sl_p
    ds_write_b32 v{vD}, v{PA(0)} offset:{KA}
    ds_read_u16 v{TX}, v{vXrd} offset:{KA}
    v_mov_b32 v49, v{PA(0)}
    ''')
    k.cos3(a, [(49, 53, 54, 55)])
    a(f'''
    s_nop 0
    v_cvt_pk_bf16_f32 v53, v53, v54
    v_cvt_pk_bf16_f32 v55, v55, v55
    s_mov_b32 exec_hi, 0
    ds_write_b16 v{vStgW}, v53 offset:0
    ds_write_b16_d16_hi v{vStgW}, v53 offset:320
    ds_write_b16 v{vStgW}, v55 offset:640
    s_mov_b64 exec, -1
    s_waitcnt lgkmcnt(0)
    v_lshl_add_u32 v{TX}, v{TX}, 5, v{vPar}
    s_add_u32 s{sLim}, s81, s26
    v_cmp_gt_i32 vcc, s{sLim}, v{vXrd}
    s_mov_b64 exec, vcc
    buffer_load_dwordx4 {vr(G(0),4)}, v{TX}, s[{SM}:{SM+3}], 0 offen
    s_mov_b64 exec, -1
    s_waitcnt vmcnt(0)
    v_mfma_f32_16x16x32_bf16 {vr(MD,4)}, {vr(G(0),4)}, {vr(B1,4)}, 0
    v_mfma_f32_16x16x32_bf16 {vr(MD+4,4)}, {vr(G(0),4)}, {vr(B2,4)}, 0
    s_nop 7
    ''')
    k.sstep_cvt(a)
    for t in range(5):
        a(f'''
        v_cmp_eq_u32 vcc, {4*t}, v{T0}
        s_nop 1
        v_cndmask_b32 v{T1}, 16, v{PO(0)}, vcc
        v_lshrrev_b32 v{T1}, v{T1}, s{sK8000}
        s_mov_b32 exec_hi, 0
        ds_write_b16 v{vStgW}, v{T1} offset:960
        s_mov_b64 exec, -1
        ds_read_b128 {vr(H,4)}, v{vStg} offset:960
        ds_read_b128 {vr(Ca,4)}, v{vStg} offset:0
        ds_read_b128 {vr(Cb,4)}, v{vStg} offset:320
        ds_read_b128 {vr(MD+4,4)}, v{vStg} offset:640
        s_waitcnt lgkmcnt(0)
        ''')
        k.sstep_masks(a)
        for p in range(4):
            a(f'v_and_b32 v{Ca+p}, v{H+p}, v{Ca+p}')
            a(f'v_and_b32 v{Cb+p}, v{H+p}, v{Cb+p}')
            a(f'v_and_b32 v{MD+4+p}, v{H+p}, v{MD+4+p}')
        a('s_nop 1')
        a(f'v_mfma_f32_16x16x32_bf16 {vr(ACC(t,0),4)}, {vr(MD,4)}, {vr(Ca,4)}, {vr(ACC(t,0),4)}')
        a(f'v_mfma_f32_16x16x32_bf16 {vr(ACC(t,1),4)}, {vr(MD,4)}, {vr(Cb,4)}, {vr(ACC(t,1),4)}')
        a(f'v_mfma_f32_16x16x32_bf16 {vr(ACC(t,2),4)}, {vr(MD,4)}, {vr(MD+4,4)}, {vr(ACC(t,2),4)}')
        a('s_nop 7')
    a('s_branch k2_sl_p')
    a.label('k2_sl_n')
    a(f'''
    s_add_u32 s{sJ}, s{sJ}, 1
    s_cmp_lt_u32 s{sJ}, {NCH}
    s_cbranch_scc1 k2_sl_c
    s_add_u32 s{sR}, s{sR}, 1
    s_cmp_lt_u32 s{sR}, {R}
    s_cbranch_scc1 k2_sl_r
    s_branch k2_epi
    ''')
    for o in k.ool:
        a.lines.extend(o.lines)
    a.label('k2_end')
    a('s_endpgm')

HEADER = f'''; Kernarg layout (112 bytes): m 0, idx_in 8, idx_out 16, dist 24, angle 32, centers 40, ang_freq 48,
; @launch kernel=k1_kernel grid=({NCH},1,1) block=(1024,1,1) lds=163840
; @launch kernel=k2_kernel grid=({NB},1,1) block=(1024,1,1) lds={K2_LDS}
.amdgcn_target "amdgcn-amd-amdhsa--gfx950"
.text
'''

def kd(name, vgpr, sgpr=102):
    acc = (vgpr + 3) // 4 * 4
    return f'''.amdhsa_kernel {name}
  .amdhsa_next_free_vgpr {vgpr}
  .amdhsa_next_free_sgpr {sgpr}
  .amdhsa_accum_offset {acc}
  .amdhsa_group_segment_fixed_size 0
  .amdhsa_kernarg_size 112
  .amdhsa_user_sgpr_count 2
  .amdhsa_user_sgpr_kernarg_segment_ptr 1
  .amdhsa_system_sgpr_workgroup_id_x 1
.end_amdhsa_kernel
'''

def main():
    a1 = Asm(); gen_k1(a1)
    a2 = Asm(); gen_k2(a2)
    for nm, a in (('k1', a1), ('k2', a2)):
        for p in check_hazards(a.lines):
            print('HAZARD', nm, p)
    txt = HEADER
    for nm, a in (('k1_kernel', a1), ('k2_kernel', a2)):
        txt += f'.globl {nm}\n.p2align 8\n.type {nm},@function\n' + a.text()
    txt += '.section .rodata,"a"\n.p2align 6\n'
    txt += kd('k1_kernel', 124) + '.p2align 6\n' + kd('k2_kernel', 128)
    out = sys.argv[1] if len(sys.argv) > 1 else f'cdna_kernels/{NAME}.s'
    open(out, 'w').write(txt)
    print('wrote', out, len(txt), 'bytes')

main()
```
